```python
import torch

def _softmax(x, axis=-1):
    return torch.softmax(x, dim=axis)
def _gelu(x):
    return torch.nn.functional.gelu(x, approximate="tanh")
def _silu(x):
    return torch.nn.functional.silu(x)
def _sigmoid(x):
    return torch.sigmoid(x)
def _layernorm(x, axis=-1, eps=1e-5):
    m = x.mean(dim=axis, keepdim=True)
    v = x.var(dim=axis, keepdim=True, unbiased=False)
    return (x - m) / torch.sqrt(v + eps)
def _scatter_add(tgt, idx, src, axis=0):
    return tgt.clone().index_add_(axis, idx, src)
def _segment_sum(src, seg, n):
    out = torch.zeros((n,) + src.shape[1:], dtype=src.dtype)
    return out.index_add_(0, seg, src)
def _pad(x, pw):
    flat = tuple(v for pair in reversed(pw) for v in pair)
    return torch.nn.functional.pad(x, flat)

kernel_name = 'parallel_sum__compressed_kv_cla__geglu_ffn__prompt'

def setup_inputs():

    _w = (lambda a: (lambda t: t.to(torch.bfloat16) if t.is_floating_point() else t)(torch.as_tensor(a)))
    def _A_setup():
        B, H, Sq, Sk, D, M = 1, 32, 2048, 2048, 128, 576
        Dc = 4 * D
        return {
            "x": _w((lambda *s: torch.randn(*s, dtype=torch.bfloat16) * 0.05)(B, Sq, M)),
            "c_kv": _w((lambda *s: torch.randn(*s, dtype=torch.bfloat16) * 1.6)(B, Sk, Dc)),
            "w_q": _w((lambda *s: torch.randn(*s, dtype=torch.bfloat16) * 0.8)(M, H, D) * (M ** -0.5)),
            "w_uk": _w((lambda *s: torch.randn(*s, dtype=torch.bfloat16) * 0.8)(Dc, H, D) * (Dc ** -0.5)),
            "w_uv": _w((lambda *s: torch.randn(*s, dtype=torch.bfloat16) * 1.6)(Dc, H, D) * (Dc ** -0.5)),
            "w_o": _w((lambda *s: torch.randn(*s, dtype=torch.bfloat16) * 1.6)(H, D, M) * ((H * D) ** -0.5)),
        }
    _A_in = _A_setup()

    def _B_setup():
        B, S, D, F = 1, 2048, 576, 4608
        return {
            "x": _w((lambda *s: torch.randn(*s, dtype=torch.bfloat16) * 0.05)(B, S, D)),
            "w_gate": _w((lambda *s: torch.randn(*s, dtype=torch.bfloat16) * 0.05)(D, F)),
            "w_up": _w((lambda *s: torch.randn(*s, dtype=torch.bfloat16) * 0.05)(D, F)),
            "w_down": _w((lambda *s: torch.randn(*s, dtype=torch.bfloat16) * 0.05)(F, D)),
        }
    _B_in = _B_setup()

    return {
        "A_x": _A_in["x"],
        "A_c_kv": _A_in["c_kv"],
        "A_w_q": _A_in["w_q"],
        "A_w_uk": _A_in["w_uk"],
        "A_w_uv": _A_in["w_uv"],
        "A_w_o": _A_in["w_o"],
        "B_x": _B_in["x"],
        "B_w_gate": _B_in["w_gate"],
        "B_w_up": _B_in["w_up"],
        "B_w_down": _B_in["w_down"],
    }

def reference(A_x, A_c_kv, A_w_q, A_w_uk, A_w_uv, A_w_o, B_x, B_w_gate, B_w_up, B_w_down):
    def _A_ref(x, c_kv, w_q, w_uk, w_uv, w_o):
        B, Sq, M = x.shape[0], x.shape[1], x.shape[2]
        Sk = c_kv.shape[1]
        H, D = w_q.shape[1], w_q.shape[2]
        q = torch.einsum("bqm,mhd->bhqd", x, w_q)
        k = torch.einsum("bkc,chd->bhkd", c_kv, w_uk)
        v = torch.einsum("bkc,chd->bhkd", c_kv, w_uv)
        scores = torch.einsum("bhqd,bhkd->bhqk", q, k) * (D ** -0.5)
        off = Sk - Sq
        qi = torch.arange(Sq)[:, None]
        kj = torch.arange(Sk)[None, :]
        cmask = kj <= (qi + off)
        scores = torch.where(cmask[None, None], scores, -1e9)
        p = _softmax(scores, axis=-1)
        ctx = torch.einsum("bhqk,bhkd->bhqd", p, v)
        return torch.einsum("bhqd,hdm->bqm", ctx, w_o)

    def _B_ref(x, w_gate, w_up, w_down):
        return (_gelu(x @ w_gate) * (x @ w_up)) @ w_down

    x = A_x
    xn = _layernorm(x, axis=-1)
    return x + _A_ref(xn, A_c_kv, A_w_q, A_w_uk, A_w_uv, A_w_o) + _B_ref(xn, B_w_gate, B_w_up, B_w_down)
```

```python
import re

class Emit:
    def __init__(self):
        self.lines = []
        self.vm = []
        self.lg = []
        self.epoch = 0
        self.reg_fill = {}
        self.fill_wait_epoch = {}
        self.read_done_epoch = {}
        self.read_pending = {}
        self.check_lds = True

    def I(self, text):
        for t in text.split("\n"):
            t = t.strip()
            if t:
                self.lines.append(t)

    def label(self, name):
        self.lines.append(name + ":")

    def comment(self, text):
        self.lines.append("; " + text)

    def vmem(self, text, tag):
        self.I(text)
        self.vm.append(tag)

    def dma(self, text, tag, region=None):
        if region is not None and self.check_lds:
            assert not self.read_pending.get(region), f"DMA into {region} while reads pending {self.read_pending.get(region)}"
            e = self.read_done_epoch.get(region)
            assert e is None or e < self.epoch, f"DMA into {region} in epoch {self.epoch}: last read completed in epoch {e} (needs a barrier)"
            self.reg_fill.setdefault(region, set()).add(tag)
            self.fill_wait_epoch.pop(region, None)
        if self.lines and re.match(r"s_\w+ m0,", self.lines[-1]):
            self.I("s_nop 0")
        self.vmem(text, tag)

    def ds(self, text, tag, region=None):
        if region is not None and self.check_lds:
            assert not self.reg_fill.get(region), f"read of {region} while its fill {self.reg_fill.get(region)} was not waited for"
            e = self.fill_wait_epoch.get(region)
            assert e is not None and e < self.epoch, f"read of {region} in epoch {self.epoch}: fill waited in epoch {e} (needs a barrier)"
            self.read_pending.setdefault(region, set()).add(tag)
            self.read_done_epoch.pop(region, None)
        self.I(text)
        self.lg.append(tag)

    def _retire_vm(self, n):
        done = self.vm[:len(self.vm) - n] if n < len(self.vm) else []
        self.vm = self.vm[len(done):]
        for region, tags in self.reg_fill.items():
            if tags:
                for t in done:
                    tags.discard(t)
                still = [t for t in tags if t in self.vm]
                if not still:
                    tags.clear()
                    self.fill_wait_epoch[region] = self.epoch

    def _retire_lg(self, n):
        done = self.lg[:len(self.lg) - n] if n < len(self.lg) else []
        self.lg = self.lg[len(done):]
        for region, tags in self.read_pending.items():
            if tags:
                still = [t for t in tags if t in self.lg]
                if not still:
                    tags.clear()
                    self.read_done_epoch[region] = self.epoch

    def wait(self, vm=None, lg=None):
        parts = []
        if vm is not None:
            tags = vm if isinstance(vm, (list, set)) else [vm]
            idx = max([i for i, t in enumerate(self.vm) if t in tags], default=-1)
            if idx >= 0:
                n = min(len(self.vm) - 1 - idx, 63)
                parts.append(f"vmcnt({n})")
                self._retire_vm(n)
        if lg is not None:
            tags = lg if isinstance(lg, (list, set)) else [lg]
            idx = max([i for i, t in enumerate(self.lg) if t in tags], default=-1)
            if idx >= 0:
                n = min(len(self.lg) - 1 - idx, 15)
                parts.append(f"lgkmcnt({n})")
                self._retire_lg(n)
        if parts:
            self.I("s_waitcnt " + " ".join(parts))

    def wait_vm_fixed(self, n, need=()):
        idx = max([i for i, t in enumerate(self.vm) if t in need], default=-1)
        if idx >= 0:
            after = len(self.vm) - 1 - idx
            assert n <= after, f"vmcnt({n}) does not cover {need}: only {after} younger ops ({self.vm})"
        self.I(f"s_waitcnt vmcnt({n})")
        self._retire_vm(n)

    def snapshot(self):
        import copy
        return copy.deepcopy((self.vm, self.lg, self.epoch, self.reg_fill, self.fill_wait_epoch, self.read_done_epoch, self.read_pending))

    def restore(self, st):
        import copy
        (self.vm, self.lg, self.epoch, self.reg_fill, self.fill_wait_epoch, self.read_done_epoch, self.read_pending) = copy.deepcopy(st)

    def loop_body(self, body, n_iter):
        start = len(self.lines)
        body(0)
        text = self.lines[start:]
        for i in range(1, n_iter):
            mark = len(self.lines)
            body(i)
            again = self.lines[mark:]
            del self.lines[mark:]
            if again != text:
                for a, b in zip(text, again):
                    if a != b:
                        raise AssertionError(f"loop iteration {i} differs: '{a}' vs '{b}'")
                raise AssertionError("loop iteration length differs")

    def wait_all(self, vm=True, lg=True):
        parts = []
        if vm:
            parts.append("vmcnt(0)"); self._retire_vm(0)
        if lg:
            parts.append("lgkmcnt(0)"); self._retire_lg(0)
        self.I("s_waitcnt " + " ".join(parts))

    def barrier(self):
        self.I("s_barrier")
        self.epoch += 1

    def text(self):
        return "\n".join(self.lines) + "\n"


def _regs(op):
    op = op.strip()
    m = re.fullmatch(r"(-?)(?:abs\()?([vas])\[(\d+):(\d+)\]\)?", op)
    if m:
        return [(m.group(2), i) for i in range(int(m.group(3)), int(m.group(4)) + 1)]
    m = re.fullmatch(r"(-?)(?:abs\()?([vas])(\d+)\)?", op)
    if m:
        return [(m.group(2), int(m.group(3)))]
    if op == "vcc":
        return [("s", "vcc")]
    if op == "exec":
        return [("s", "exec")]
    if op == "m0":
        return [("s", "m0")]
    return []

TRANS = ("v_exp_f32", "v_log_f32", "v_rcp_f32", "v_rsq_f32", "v_sqrt_f32", "v_sin_f32", "v_cos_f32")

def parse(line):
    line = line.split(";")[0].strip()
    if not line or line.endswith(":") or line.startswith("."):
        return None
    parts = line.split(None, 1)
    mn = parts[0]
    ops = []
    if len(parts) > 1:
        ops = [o.strip() for o in parts[1].split(",")]
        if ops:
            last = ops[-1].split()
            ops[-1] = last[0] if last else ""
    mods = line
    d = dict(mn=mn, ops=ops, line=line, w=[], r=[], kind="other")
    base = re.sub(r"_(e32|e64|dpp|sdwa)$", "", mn)
    if mn.startswith("v_mfma"):
        d["kind"] = "mfma"
        d["passes"] = 8 if "32x32" in mn else 4
        d["w"] = _regs(ops[0]); d["a"] = _regs(ops[1]); d["b"] = _regs(ops[2]); d["c"] = _regs(ops[3])
        d["r"] = d["a"] + d["b"] + d["c"]
    elif mn.startswith("v_cmp"):
        d["kind"] = "valu"; d["w"] = _regs(ops[0]); d["r"] = sum((_regs(o) for o in ops[1:]), [])
    elif mn in ("v_readfirstlane_b32", "v_readlane_b32"):
        d["kind"] = "valu"; d["lane"] = True; d["w"] = _regs(ops[0]); d["r"] = sum((_regs(o) for o in ops[1:]), [])
    elif mn.startswith("v_permlane"):
        d["kind"] = "valu"; d["perm"] = True; d["w"] = _regs(ops[0]) + _regs(ops[1]); d["r"] = d["w"]
    elif mn.startswith("v_"):
        d["kind"] = "valu"
        d["w"] = _regs(ops[0]); rest = ops[1:]
        if base in ("v_add_co_u32", "v_addc_co_u32", "v_sub_co_u32"):
            d["w"] += _regs(ops[1]); rest = ops[2:]
        d["r"] = sum((_regs(o) for o in rest), [])
        if base in ("v_fmac_f32", "v_pk_fmac_f32"):
            d["r"] += d["w"]
        if base == "v_cndmask_b32" and len(ops) == 3:
            d["r"].append(("s", "vcc"))
        d["trans"] = base in TRANS
        d["dpp"] = ("quad_perm" in mods or "row_" in mods)
        if d["dpp"]:
            d["r"] += []
    elif mn.startswith("ds_read") or mn.startswith("ds_swizzle") or mn.startswith("ds_bpermute"):
        d["kind"] = "ds"; d["w"] = _regs(ops[0]); d["r"] = sum((_regs(o) for o in ops[1:]), [])
    elif mn.startswith("ds_"):
        d["kind"] = "ds"; d["r"] = sum((_regs(o) for o in ops), [])
    elif mn.startswith("buffer_load"):
        d["kind"] = "vmem"
        if " lds" in mods:
            d["lds"] = True; d["r"] = sum((_regs(o) for o in ops), []) + [("s", "m0")]
        else:
            d["w"] = _regs(ops[0]); d["r"] = sum((_regs(o) for o in ops[1:]), [])
    elif mn.startswith("buffer_store") or mn.startswith("buffer_atomic") or mn.startswith("global_atomic") or mn.startswith("global_store"):
        d["kind"] = "vmem"; d["store"] = True
        d["r"] = sum((_regs(o) for o in ops), [])
        if mn.startswith("buffer_store"):
            d["data"] = _regs(ops[0]); d["wide"] = ("x3" in mn or "x4" in mn)
        elif mn.startswith("global_store"):
            d["data"] = _regs(ops[1]); d["wide"] = ("x3" in mn or "x4" in mn)
    elif mn.startswith("global_load"):
        d["kind"] = "vmem"; d["w"] = _regs(ops[0]); d["r"] = sum((_regs(o) for o in ops[1:]), [])
    elif mn.startswith("s_nop"):
        d["kind"] = "nop"; d["n"] = int(ops[0]) + 1
    elif mn.startswith("s_"):
        d["kind"] = "salu"
        if mn.startswith(("s_cmp", "s_cbranch", "s_branch", "s_waitcnt", "s_barrier", "s_endpgm", "s_setprio", "s_sleep")):
            d["r"] = sum((_regs(o) for o in ops), [])
        else:
            d["w"] = _regs(ops[0]) if ops else []
            d["r"] = sum((_regs(o) for o in ops[1:]), [])
            if "saveexec" in mn:
                d["w"] += [("s", "exec")]
    return d

def lint(lines, window=24):
    ins = [(n, parse(l)) for n, l in enumerate(lines)]
    ins = [(n, p) for n, p in ins if p]
    errs = []
    for idx, (n, cur) in enumerate(ins):
        dist = 0
        rs, ws = set(cur["r"]), set(cur["w"])
        for back in range(idx - 1, max(-1, idx - 1 - window), -1):
            pn, prev = ins[back]
            need = 0; why = ""
            pw = set(prev["w"])
            k, pk = cur["kind"], prev["kind"]
            if pk == "valu":
                vw = {r for r in pw if r[0] in "va"}
                sw = {r for r in pw if r[0] == "s"}
                if k == "mfma" and vw & rs: need, why = 2, "VALU write -> MFMA read"
                if k == "valu" and cur.get("perm") and vw & rs: need, why = max(need, 2), "VALU write -> permlane"
                if k == "valu" and cur.get("lane") and vw & rs: need, why = max(need, 1), "VALU write -> readlane"
                if k == "valu" and cur.get("dpp") and vw & rs: need, why = max(need, 2), "VALU write -> DPP"
                if k == "valu" and prev.get("trans") and not cur.get("trans") and vw & rs: need, why = max(need, 1), "trans -> VALU"
                if k == "mfma" and prev.get("trans") and vw & rs: need = max(need, 2)
                if k == "vmem" and sw & rs: need, why = max(need, 5), "VALU write SGPR -> VMEM"
                if k == "valu" and sw & rs and not cur.get("lane"): need, why = max(need, 2), "VALU write SGPR/VCC -> VALU read"
                if k == "valu" and sw & rs and cur.get("lane"): need, why = max(need, 4), "VALU write SGPR -> lane select"
                if ("s", "exec") in sw and k == "mfma": need, why = max(need, 4), "VALU write EXEC -> MFMA"
            if pk == "mfma":
                p = prev["passes"]
                rd = {4: 8, 8: 12}[p]; ov = {4: 6, 8: 10}[p]; war = {4: 3, 8: 7}[p]
                if k == "mfma":
                    if pw & (set(cur["a"]) | set(cur["b"])): need, why = rd, "MFMA D -> MFMA A/B"
                    cc = set(cur["c"])
                    if pw & cc and not (cc == pw and cur["passes"] == p): need, why = max(need, ov), "MFMA D -> MFMA C overlap"
                    if pw & ws and not (ws == pw and cc == pw): need, why = max(need, ov), "MFMA D -> MFMA D (WAW)"
                elif k in ("valu", "vmem", "ds"):
                    if pw & (rs | ws): need, why = rd, "MFMA D -> VALU/VMEM/DS access"
                    if k == "valu" and set(prev["c"]) & ws: need, why = max(need, war), "MFMA C read -> VALU write"
            if pk == "salu" and ("s", "m0") in pw and cur.get("lds"): need, why = max(need, 1), "M0 write -> LDS DMA"
            if pk == "vmem" and prev.get("store") and prev.get("wide") and k == "valu" and set(prev["data"]) & ws:
                need, why = max(need, 2), "wide store data -> VALU overwrite"
            if need > dist:
                errs.append(f"line {n+1}: '{cur['line']}' needs {need} wait states after line {pn+1} '{prev['line']}' ({why}), has {dist}")
            dist += prev["n"] if pk == "nop" else 1
            if dist >= 13:
                break
    return errs
```

```python
from common import *
from engine import Gemm
import os
KN = set(os.environ.get("KNOBS", "").split(","))

S_WQ, S_KS, S_VS, S_WS = 8, 12, 16, 20
S_W, S_HEAD, S_P = 28, 29, 30
S_WBASE, S_WM0, S_XA, S_XB, S_T, S_T2 = 32, 33, 34, 35, 36, 37
S_KD, S_KM, S_DA, S_DB, S_CNT, S_RET, S_THR, S_CB = 38, 39, 43, 44, 45, 46, 47, 48
S_M0, S_M1, S_M2, S_M3 = 50, 52, 54, 56
V_L, V_L16, V_KA, V_VA, V_U, V_LA, V_LB, V_MX, V_NINF, V_T = 0, 1, 2, 3, 4, 5, 6, 7, 8, 9
V_WD, V_WR, V_XL = 16, 18, 26
V_RB = 15
V_LS = (28, 29)
V_E = 200
V_QF, V_QODD = 32, 96
V_S, V_P, V_NEG = (96, 112), (128, 136), (144, 160)
V_WBUF = 176
A_O = (0, 64)
A_K, A_V, A_X = 128, 160, 192
K_RING, V_RING, Q_RING = 0, 65536, 98304
QSCALE = 1.4426950408889634 / (128.0 ** 0.5)
THR = 512.0
LK, LV = 7, 4

def setup(k):
    k.I(f"s_load_dwordx2 s[{S_WQ}:{S_WQ+1}], s[0:1], {KA_WQ}")
    k.I(f"s_load_dwordx2 s[{S_WS}:{S_WS+1}], s[0:1], {KA_WS}")
    k.I(f"v_lshrrev_b32 v{V_T}, 6, v0")
    k.I(f"v_and_b32 v{V_L}, 63, v0")
    k.I(f"v_readfirstlane_b32 s{S_W}, v{V_T}")
    k.I("s_and_b32 s3, s2, 7")
    k.I("s_lshr_b32 s4, s2, 3")
    k.I("s_lshl_b32 s3, s3, 2")
    k.I("s_and_b32 s5, s4, 3")
    k.I(f"s_add_u32 s{S_HEAD}, s3, s5")
    k.I(f"s_lshr_b32 s{S_P}, s4, 2")
    k.wait_all(vm=False)
    srd(k, S_WQ, 576 * 4096 * 2)
    srd(k, S_WS, WS_SIZE)

def addresses(k):
    a, b, c, d = V_T, V_T + 1, V_T + 2, V_T + 3
    L = V_L
    k.I(f"v_lshlrev_b32 v{V_L16}, 4, v{L}")
    k.I(f"v_lshrrev_b32 v{a}, 4, v{L}")
    k.I(f"v_and_b32 v{c}, 15, v{L}")
    k.I(f"s_lshl_b32 s3, s{S_W}, 3")
    for j in range(2):
        k.I(f"v_add_u32 v{b}, {4*j}, v{a}")
        k.I(f"v_lshlrev_b32 v{d}, 1, v{b}")
        k.I(f"v_xor_b32 v{d}, v{d}, v{c}")
        k.I(f"v_lshlrev_b32 v{d}, 4, v{d}")
        k.I(f"v_add_u32 v{b}, s3, v{b}")
        k.I(f"v_lshl_add_u32 v{V_WD+j}, v{b}, 13, v{d}")
        if j: k.I(f"v_subrev_u32 v{V_WD+j}, 1024, v{V_WD+j}")
    k.I(f"s_lshl_b32 s{S_WBASE}, s{S_HEAD}, 8")
    k.I(f"s_lshl_b32 s3, s{S_W}, 11")
    k.I(f"s_add_u32 s{S_WM0}, s3, {Q_RING}")
    k.I(f"v_and_b32 v{b}, 15, v{L}")
    k.I(f"v_lshrrev_b32 v{c}, 2, v{b}")
    k.I(f"v_and_b32 v{d}, 1, v{a}")
    k.I(f"v_lshl_add_u32 v{d}, v{d}, 2, v{c}")
    k.I(f"v_lshl_add_u32 v{c}, v{a}, 2, v{c}")
    k.I(f"v_lshlrev_b32 v{c}, 8, v{c}")
    k.I(f"v_and_b32 v{b}, 3, v{b}")
    k.I(f"v_lshl_add_u32 v{c}, v{b}, 3, v{c}")
    k.I(f"v_add_u32 v{c}, {Q_RING}, v{c}")
    for cb in range(8):
        k.I(f"v_xor_b32 v{b}, {cb}, v{d}")
        k.I(f"v_lshl_add_u32 v{V_WR+cb}, v{b}, 5, v{c}")
    k.I(f"v_mov_b32 v{V_XL}, v{V_L16}")
    k.I(f"v_add_u32 v{V_XL+1}, 18432, v{V_L16}")
    k.I(f"s_lshl_b32 s3, s{S_P}, 3")
    k.I(f"s_lshl_b32 s4, s{S_W}, 1")
    k.I(f"s_add_u32 s5, s3, s4")
    k.I(f"s_mul_i32 s{S_XA}, s5, 18432")
    k.I(f"s_sub_u32 s6, 120, s3")
    k.I(f"s_add_u32 s6, s6, s4")
    k.I(f"s_mul_i32 s{S_XB}, s6, 18432")
    if XN_OFF:
        k.I(f"s_add_u32 s{S_XA}, s{S_XA}, {XN_OFF}\ns_add_u32 s{S_XB}, s{S_XB}, {XN_OFF}")
    k.I(f"s_lshl_b32 s3, s{S_HEAD}, 20")
    k.I(f"s_add_u32 s3, s3, {KV_OFF}")
    k.I(f"s_lshl_b32 s4, s{S_P}, 16")
    k.I(f"s_sub_u32 s5, {64*16384}, s4")
    k.I(f"s_add_u32 s5, s5, s3")
    k.I(f"s_mov_b32 s{S_KS}, s{S_WS}\ns_mov_b32 s{S_KS+1}, s{S_WS+1}\ns_mov_b32 s{S_KS+2}, s5\ns_mov_b32 s{S_KS+3}, 0x20000")
    millig = (LK - LV) * 16384 - 8192
    k.I(f"s_sub_u32 s{S_VS}, s{S_WS}, {millig}\ns_subb_u32 s{S_VS+1}, s{S_WS+1}, 0")
    k.I(f"s_add_u32 s{S_VS+2}, s5, {(LK-LV)*16384}\ns_mov_b32 s{S_VS+3}, 0x20000")
    k.I(f"s_lshl_b32 s4, s{S_W}, 11")
    k.I(f"s_add_u32 s{S_KD}, s3, s4")
    k.I(f"s_mov_b32 s{S_KM}, s4")
    k.I(f"s_lshl_b32 s3, s{S_P}, 7")
    k.I(f"s_lshl_b32 s4, s{S_W}, 5")
    k.I(f"s_add_u32 s{S_DA}, s3, s4")
    k.I(f"s_sub_u32 s3, 1920, s3")
    k.I(f"s_add_u32 s{S_DB}, s3, s4")
    k.I(f"v_lshrrev_b32 v{a}, 5, v{L}")
    k.I(f"v_lshlrev_b32 v{a}, 2, v{a}")
    k.I(f"v_and_b32 v{b}, 31, v{L}")
    k.I(f"v_sub_u32 v{V_U}, v{a}, v{b}")
    k.I(f"v_mov_b32 v{V_NINF}, 0xff800000")
    k.I(f"v_mov_b32 v{V_KA}, v{V_L16}")
    k.I(f"v_add_u32 v{V_VA}, {V_RING + (LK-LV)*8192}, v{V_L16}")
    k.I(f"v_mov_b32 v{V_LA}, 0")
    k.I(f"v_mov_b32 v{V_LB}, 0")
    k.I(f"s_mov_b32 s{S_THR}, {THR!r}")
    k.I(f"s_mov_b32 s49, 0xffff")

def qacc():
    m = {}
    for db in range(8):
        for j in range(4):
            base = V_QF if db % 2 == 0 else V_QODD
            m[db, j] = Reg("v", base + 16 * (db // 2) + 4 * j)
    return m

def make_q(k, aux):
    def w_read(s, f, hh, dst, tag):
        slot = s % 8
        k.ds(f"ds_read_b64_tr_b16 v[{dst}:{dst+1}], v{V_WR+f} offset:{slot*8192 + hh*4096}", tag, ("QW", slot))
    def w_dma(s):
        slot = s % 8; acts = []
        def m0():
            k.I(f"s_add_u32 m0, s{S_WM0}, {slot*8192}")
        def so():
            k.I(f"s_add_u32 s{S_T}, s{S_WBASE}, {s*32*8192}")
        acts += [m0, so]
        for j in range(2):
            def f(j=j):
                k.dma(f"buffer_load_dwordx4 v{V_WD+j}, s[{S_WQ}:{S_WQ+3}], s{S_T} offen offset:{1024*j} lds", ("W", "q", s), ("QW", slot))
            acts.append(f)
        return acts
    def x_load(s, j, dst):
        acts = []
        if j % 2 == 0:
            acts.append(lambda: k.I(f"s_add_u32 s{S_T2}, s{S_XA if j < 2 else S_XB}, {s*1024}"))
        acts.append(lambda: k.vmem(f"buffer_load_dwordx4 a[{dst}:{dst+3}], v{V_XL + j%2}, s[{S_WS}:{S_WS+3}], s{S_T2} offen {aux}", ("X", "q", s)))
        return acts
    return Gemm(k, "q", 18, 8, qacc(), V_WBUF, 6, 4, A_X, 4, 8, w_read, w_dma, x_load, wfile="v", pre_tiles=3)

class Attn:
    def __init__(self, k, name, aux):
        self.k, self.name, self.aux = k, name, aux
        self.j = -LK
        self.ka = 0; self.va = 0
        self.rare_sites = []; self.mask_sites = []

    def dma_group(self, with_v=True):
        k = self.k; j = self.j; self.j += 1
        kb, vb = j + LK, j + LV; slot = kb % 8
        acts = [lambda: k.I(f"s_and_b32 m0, s{S_KM}, s49")]
        for off in (0, 1024):
            acts.append(lambda off=off: k.dma(f"buffer_load_dwordx4 v{V_L16}, s[{S_KS}:{S_KS+3}], s{S_KD} offen offset:{off} {self.aux} lds", ("K", kb), ("K", slot)))
        if with_v:
            acts.append(lambda: k.I(f"s_bitset1_b32 m0, 16"))
            acts.append(lambda: k.I(f"s_add_u32 s{S_KM}, s{S_KM}, 8192"))
            for off in (0, 1024):
                acts.append(lambda off=off: k.dma(f"buffer_load_dwordx4 v{V_L16}, s[{S_VS}:{S_VS+3}], s{S_KD} offen offset:{off} {self.aux} lds", ("V", vb), ("V", slot)))
        else:
            acts.append(lambda: k.I(f"s_add_u32 s{S_KM}, s{S_KM}, 8192"))
        acts.append(lambda: k.I(f"s_add_u32 s{S_KD}, s{S_KD}, 16384"))
        return acts

    def read_k(self, off=0):
        k = self.k; kb = self.ka; self.ka += 1
        return [lambda f=f: k.ds(f"ds_read_b128 a[{A_K+4*f}:{A_K+4*f+3}], v{V_KA} offset:{off+1024*f}", ("KF", f), ("K", kb % 8)) for f in range(8)]
    def read_v(self, off=0):
        k = self.k; kb = self.va; self.va += 1
        return [lambda f=f: k.ds(f"ds_read_b128 a[{A_V+4*f}:{A_V+4*f+3}], v{V_VA} offset:{off+1024*f}", ("VF", f), ("V", (kb + LK - LV) % 8))
                for f in [2 * db + a for a in range(2) for db in range(4)]]
    def upd_k(self, step):
        k = self.k
        return [lambda: k.I(f"v_add_u32 v{V_KA}, {step}, v{V_KA}"), lambda: k.I(f"v_and_b32 v{V_KA}, 0xffff, v{V_KA}")]
    def upd_v(self, step):
        k = self.k
        return [lambda: k.I(f"v_add_u32 v{V_VA}, {step}, v{V_VA}"), lambda: k.I(f"v_and_or_b32 v{V_VA}, v{V_VA}, s49, v{V_RB}")]

    def qk_list(self, G, sb):
        k = self.k; out = []
        for ks in range(8):
            dp, s = divmod(ks, 2)
            q = V_QF + 16 * dp + 4 * (2 * G + s)
            S = V_S[sb]
            c = f"v[{V_NEG[G]}:{V_NEG[G]+15}]" if ks == 0 else f"v[{S}:{S+15}]"
            ins = f"v_mfma_f32_32x32x16_bf16 v[{S}:{S+15}], a[{A_K+4*ks}:{A_K+4*ks+3}], v[{q}:{q+3}], {c}"
            if ks % 4 == 0:
                out.append(lambda ins=ins, ks=ks: (k.wait(lg=[("KF", f) for f in range(ks + 4)]), k.I(ins)))
            else:
                out.append(ins)
        return out
    def pv_list(self, G, pb):
        k = self.k; out = []
        for a in range(2):
            for db in range(4):
                O = A_O[G] + 16 * db; f = 2 * db + a; P = V_P[pb] + 4 * a
                ins = f"v_mfma_f32_32x32x16_bf16 a[{O}:{O+15}], a[{A_V+4*f}:{A_V+4*f+3}], v[{P}:{P+3}], a[{O}:{O+15}]"
                if db == 0:
                    out.append(lambda ins=ins, a=a: (k.wait(lg=[("VF", 2 * d + aa) for d in range(4) for aa in range(a + 1)]), k.I(ins)))
                else:
                    out.append(ins)
        return out

    def mask_code(self, sb, sdelta):
        k = self.k; S = V_S[sb]
        k.I(f"v_sub_u32 v{V_T}, s{sdelta}, v{V_U}")
        ms = [S_M0, S_M1, S_M2, S_M3]
        for q in range(4):
            for b in range(4):
                k.I(f"v_cmp_gt_i32 s[{ms[b]}:{ms[b]+1}], {8*q+b}, v{V_T}")
            for b in range(4):
                k.I(f"v_cndmask_b32 v{S+4*q+b}, v{S+4*q+b}, v{V_NINF}, s[{ms[b]}:{ms[b]+1}]")

    def mask_acts(self, sb, sdelta, uid):
        k = self.k
        lab = f"{self.name}_mask_{uid}"
        if (lab, sb, sdelta) not in self.mask_sites:
            self.mask_sites.append((lab, sb, sdelta))
        def a0(): k.I(f"s_cmp_le_i32 s{sdelta}, 0")
        def a1():
            k.I(f"s_cbranch_scc1 {lab}")
            k.label(f"{lab}_ret")
        def a2(): k.I(f"s_sub_i32 s{sdelta}, s{sdelta}, 32")
        return a0, a1, a2

    def max_acts(self, sb):
        k = self.k; S = V_S[sb]; acts = []
        acts.append(lambda: k.I(f"v_max3_f32 v{V_MX}, v{S}, v{S+1}, v{S+2}"))
        for i in range(6):
            acts.append(lambda i=i: k.I(f"v_max3_f32 v{V_MX}, v{V_MX}, v{S+3+2*i}, v{S+4+2*i}"))
        acts.append(lambda: k.I(f"v_max_f32 v{V_MX}, v{V_MX}, v{S+15}"))
        return acts

    def row_max(self, sb):
        k = self.k; t = V_T
        for f in self.max_acts(sb): f()
        k.I(f"v_mov_b32 v{t}, v{V_MX}\nv_mov_b32 v{t+1}, v{V_MX}\ns_nop 1")
        k.I(f"v_permlane32_swap_b32 v{t}, v{t+1}\ns_nop 1")
        k.I(f"v_max_f32 v{t}, v{t}, v{t+1}")

    def init_max(self, G, sb):
        k = self.k; S = V_S[sb]; N = V_NEG[G]; t = V_T
        self.row_max(sb)
        k.I(f"v_ceil_f32 v{t}, v{t}")
        for r in range(16):
            k.I(f"v_sub_f32 v{S+r}, v{S+r}, v{t}")
        for r in range(16):
            k.I(f"v_sub_f32 v{N+r}, 0, v{t}")
        k.I("s_nop 1")

    def rescale(self, G, sb, pb, same_next):
        k = self.k; S = V_S[sb]; N = V_NEG[G]; Lr = V_LA if G == 0 else V_LB; P = V_P[pb]; Ls = V_LS[sb]
        t = V_T
        k.I("s_nop 15\ns_nop 7")
        self.row_max(sb)
        k.I(f"v_max_f32 v{t}, 0, v{t}")
        k.I(f"v_ceil_f32 v{t}, v{t}")
        for r in range(16):
            k.I(f"v_sub_f32 v{S+r}, v{S+r}, v{t}")
        for r in range(16):
            k.I(f"v_sub_f32 v{N+r}, v{N+r}, v{t}")
        if same_next:
            S2 = V_S[1 - sb]
            for r in range(16):
                k.I(f"v_sub_f32 v{S2+r}, v{S2+r}, v{t}")
        k.I(f"v_exp_f32 v{t+1}, -v{t}\ns_nop 0")
        k.I(f"v_mul_f32 v{Lr}, v{Lr}, v{t+1}")
        for r in range(64):
            o = A_O[G] + r; x = t + 2 + (r % 4)
            k.I(f"v_accvgpr_read_b32 v{x}, a{o}")
            k.I(f"v_mul_f32 v{x}, v{x}, v{t+1}")
            k.I(f"v_accvgpr_write_b32 a{o}, v{x}")
        cidx = {4 * a + o: (a, i) for a in range(2) for i, o in enumerate((0, 2, 8, 10))}
        for r in range(0, 16, 2):
            e0, e1 = V_E + (r % 8), V_E + (r % 8) + 1
            k.I(f"v_exp_f32 v{e0}, v{S+r}\nv_exp_f32 v{e1}, v{S+r+1}\ns_nop 0")
            if r == 0:
                k.I(f"v_add_f32 v{Ls}, v{e0}, v{e1}")
            else:
                k.I(f"v_add_f32 v{Ls}, v{Ls}, v{e0}\nv_add_f32 v{Ls}, v{Ls}, v{e1}")
            a, i = cidx[r]
            k.I(f"v_cvt_pk_bf16_f32 v{P+4*a+i}, v{e0}, v{e1}")
        k.I("s_nop 1")

    def emit_out_of_line(self):
        k = self.k
        for lab, sb, sdelta in self.mask_sites:
            k.label(lab)
            k.I("s_nop 7")
            self.mask_code(sb, sdelta)
            k.I(f"s_branch {lab}_ret")
        keys = {}
        for site, key in self.rare_sites:
            keys.setdefault(key, []).append(site)
        for key, sites in keys.items():
            G, sb, pb, same_next = key
            lab = f"{self.name}_rare_{G}_{sb}_{pb}_{int(same_next)}"
            for i, site in enumerate(sites):
                k.label(f"{site}_call")
                k.I(f"s_mov_b32 s{S_RET}, {i}")
                if i < len(sites) - 1:
                    k.I(f"s_branch {lab}")
            k.label(lab)
            self.rescale(G, sb, pb, same_next)
            for i, site in enumerate(sites[:-1]):
                k.I(f"s_cmp_eq_u32 s{S_RET}, {i}")
                k.I(f"s_cbranch_scc1 {site}_ret")
            k.I(f"s_branch {sites[-1]}_ret")

    def sm_ops(self, G, sb, pb):
        k = self.k
        S, P, Ls = V_S[sb], V_P[pb], V_LS[sb]
        cidx = {4 * a + o: (a, i) for a in range(2) for i, o in enumerate((0, 2, 8, 10))}
        e = lambda r: V_E + r % 8
        E = lambda r: (lambda: k.I(f"v_exp_f32 v{e(r)}, v{S+r}"))
        def Aa(r):
            if r == 1: return lambda: k.I(f"v_add_f32 v{Ls}, v{e(0)}, v{e(1)}")
            return lambda: k.I(f"v_add_f32 v{Ls}, v{Ls}, v{e(r)}")
        def C(r):
            a, i = cidx[r]
            return lambda: k.I(f"v_cvt_pk_bf16_f32 v{P+4*a+i}, v{e(r)}, v{e(r+1)}")
        return E, Aa, C

    def site(self, uid, G, sb, pb, same_next):
        k = self.k
        site = f"{self.name}_site_{uid}"
        if site not in [x for x, _ in self.rare_sites]:
            self.rare_sites.append((site, (G, sb, pb, same_next)))
        cmp_ = lambda: k.I(f"v_cmp_lt_f32 vcc, s{S_THR}, v{V_LS[sb]}")
        def br():
            k.I(f"s_cbranch_vccnz {site}_call")
            k.label(f"{site}_ret")
        Lr = V_LA if G == 0 else V_LB
        ladd = lambda: k.I(f"v_add_f32 v{Lr}, v{Lr}, v{V_LS[sb]}")
        return cmp_, br, ladd

    def simple_slot(self, uid, qk=None, sm=None, pv=None, kread=None, vread=None, nxt=None, dmas=(), same_next=False, post=()):
        k = self.k
        G, sb, pb = sm
        if vread is not None:
            for f in self.read_v(vread): f()
        mf = (self.qk_list(*qk) if qk else []) + (self.pv_list(*pv) if pv else [])
        E, Aa, C = self.sm_ops(G, sb, pb)
        items = []
        for r in range(0, 16, 2):
            items += [E(r), E(r + 1), lambda: k.I("s_nop 0")]
            if r: items.append(Aa(r))
            items += [Aa(r + 1), C(r)]
        per = (len(items) + len(mf) - 1) // len(mf)
        dm = list(dmas)
        for m, ins in enumerate(mf):
            ins() if callable(ins) else k.I(ins)
            if dm: dm.pop(0)()
            for f in items[m * per:(m + 1) * per]: f()
        for f in dm: f()
        if kread is not None:
            for f in self.read_k(kread): f()
        cmp_, br, ladd = self.site(uid, G, sb, pb, same_next)
        cmp_(); k.I("s_nop 3"); br(); ladd()
        for f in post: f()
        if nxt:
            k.I("s_nop 15")
            self.init_max(*nxt)

    def slot(self, uid, qk, sm, pv, kread=None, vread=None, mask=None, dmas=(), bar=None, loop=None, same_next=False,
             vec_early=(), vec_late=(), vec_last=()):
        k = self.k
        mf = self.qk_list(*qk) + self.pv_list(*pv)
        sal = [[] for _ in range(16)]; dsl = [[] for _ in range(16)]; dml = [[] for _ in range(16)]; ve = [[] for _ in range(16)]
        used = [0] * 16
        g0 = 0; pre = []
        if bar:
            pre.append(lambda: k.wait_vm_fixed(*bar))
            sal[0].append(k.barrier); g0 = 1
        for gw in (3, 7, 11): used[gw] += 1
        G, sb, pb = sm
        cmp_, br, ladd = self.site(uid, G, sb, pb, same_next)
        sal[15].append(br)
        a2 = None
        if mask:
            a0, a1, a2 = self.mask_acts(mask[0], mask[1], uid)
            sal[9] += [a0, a1]
        if vread is not None and kread is not None:
            vg = list(range(g0, g0 + 8)) if g0 else [0, 1, 2, 3, 4, 5, 6, 7]
            kg = [10, 10, 11, 12, 13, 13, 14, 15] if g0 else [8, 10, 10, 11, 12, 13, 13, 14]
        elif vread is not None:
            vg = [0, 1, 2, 3, 4, 5, 6, 7] if not g0 else list(range(1, 9)); kg = []
        elif kread is not None:
            vg = []; kg = [5, 6, 7, 8, 10, 11, 12, 13]
        else:
            vg = kg = []
        if vread is not None:
            for x, f in zip(vg, self.read_v(vread)): dsl[x].append(f)
        if kread is not None:
            for x, f in zip(kg, self.read_k(kread)): dsl[x].append(f)
        if dmas:
            m0, k0, k1, bs, kma, v0, v1, kda = dmas
            gd = [2, 4, 6, 8]
            sal[gd[0] - 1].append(m0); dml[gd[0]].append(k0); dml[gd[1]].append(k1)
            sal[gd[2]].append(bs); sal[gd[1] + 1].append(kma) if False else None
            dml[gd[2]].append(v0); dml[gd[3]].append(v1)
            sal[gd[3]].append(kma); sal[10].append(kda)
        if a2: sal[11].append(a2)
        if loop:
            sal[15].append(lambda: k.I(f"s_sub_u32 s{S_CNT}, s{S_CNT}, 1"))
        def cap(x):
            nd, nm = len(dsl[x]), len(dml[x])
            c = 5
            if nm: c = 3
            elif nd >= 2: c = 4
            if len(sal[x]) >= 2 and (nd or nm): c -= 1
            return c
        used[14] += 1
        x = g0
        for f in vec_early:
            while used[x] >= cap(x): x += 1
            assert x < 9
            ve[x].append(f); used[x] += 1
        late = list(vec_late)
        E, Aa, C = self.sm_ops(G, sb, pb)
        e = 0; pendA = []; pendC = []
        for x in range(g0, 15):
            free = cap(x) - used[x]
            last_e = None
            while free > 0 or x == 14:
                readyA = [r for r in pendA if r != last_e and not (r == 1 and last_e == 0)]
                readyC = [r for r in pendC if r + 1 != last_e and r != last_e]
                canE = e < 16 and (free >= 2 or x == 14)
                if canE and len(pendA) + len(pendC) <= 2:
                    pick = "E"
                elif readyA: pick = "A"
                elif readyC: pick = "C"
                elif canE: pick = "E"
                elif x == 14 and (pendA or pendC): pick = "N"
                else: break
                if pick == "E":
                    ve[x].append(E(e))
                    if e >= 1: pendA.append(e)
                    if e % 2 == 1: pendC.append(e - 1)
                    last_e = e; e += 1; free -= 2; used[x] += 2
                elif pick == "A":
                    r = readyA[0]; pendA.remove(r); ve[x].append(Aa(r)); free -= 1; used[x] += 1; last_e = None
                elif pick == "C":
                    r = readyC[0]; pendC.remove(r); ve[x].append(C(r)); free -= 1; used[x] += 1; last_e = None
                else:
                    ve[x].append(lambda: k.I("s_nop 0")); last_e = None
            if late and x >= 9 and free > 0 and e == 16:
                while late and free > 0:
                    ve[x].append(late.pop(0)); free -= 1; used[x] += 1
        assert e == 16 and not pendA and not pendC
        ve[14].append(cmp_)
        ve[15].append(ladd)
        for f in late + list(vec_last): ve[15].append(f)
        if loop:
            ve[15].append(lambda: k.I(f"s_cbranch_scc0 {loop}"))
        if os.environ.get('SHOWUSE'): print(uid, used, [cap(x) for x in range(16)], len(ve[15]))
        for f in pre: f()
        for g, m in enumerate(mf):
            m() if callable(m) else k.I(m)
            for f in sal[g]: f()
            for f in dsl[g]: f()
            for f in dml[g]: f()
            for f in ve[g]: f()

QACC = qacc()

def q_epilogue(k):
    k.I(f"s_mov_b32 s3, {QSCALE!r}")
    for dp in range(4):
        for j in range(4):
            x, y = QACC[2*dp, j].base, QACC[2*dp+1, j].base
            for r in range(0, 4, 2):
                k.I(f"v_pk_mul_f32 v[{x+r}:{x+r+1}], v[{x+r}:{x+r+1}], s[2:3] op_sel:[0,1] op_sel_hi:[1,1]" if False else f"v_mul_f32 v{x+r}, s3, v{x+r}\nv_mul_f32 v{x+r+1}, s3, v{x+r+1}")
                k.I(f"v_mul_f32 v{y+r}, s3, v{y+r}\nv_mul_f32 v{y+r+1}, s3, v{y+r+1}")
            k.I(f"v_cvt_pk_bf16_f32 v{x}, v{x}, v{x+1}")
            k.I(f"v_cvt_pk_bf16_f32 v{x+1}, v{x+2}, v{x+3}")
            k.I(f"v_cvt_pk_bf16_f32 v{x+2}, v{y}, v{y+1}")
            k.I(f"v_cvt_pk_bf16_f32 v{x+3}, v{y+2}, v{y+3}")
    for dp in range(4):
        for G in range(2):
            x, y = QACC[2*dp, 2*G].base, QACC[2*dp, 2*G+1].base
            for r in range(4):
                k.I(f"v_permlane16_swap_b32 v{x+r}, v{y+r}")
            for r in range(4):
                k.I(f"v_permlane32_swap_b32 v{x+r}, v{y+r}")

def ctx_epilogue(k, aux):
    t = V_T
    a, b = V_T, V_T + 1
    VST = V_WD
    k.I(f"v_and_b32 v{a}, 31, v{V_L}")
    k.I(f"v_lshrrev_b32 v{b}, 4, v{a}")
    k.I(f"v_lshlrev_b32 v{VST}, 17, v{b}")
    k.I(f"v_and_b32 v{a}, 15, v{a}")
    k.I(f"v_lshrrev_b32 v{b}, 5, v{V_L}")
    k.I(f"v_lshl_add_u32 v{a}, v{b}, 4, v{a}")
    k.I(f"v_lshl_add_u32 v{VST}, v{a}, 4, v{VST}")
    for G in range(2):
        Lr = V_LA if G == 0 else V_LB
        k.I(f"v_mov_b32 v{t}, v{Lr}\nv_mov_b32 v{t+1}, v{Lr}\ns_nop 1")
        k.I(f"v_permlane32_swap_b32 v{t}, v{t+1}\ns_nop 1")
        k.I(f"v_add_f32 v{t}, v{t}, v{t+1}")
        k.I(f"v_rcp_f32 v{Lr}, v{t}")
        k.I(f"s_lshl_b32 s3, s{S_P}, 3")
        if G == 1: k.I(f"s_sub_u32 s3, 120, s3")
        k.I(f"s_lshl_b32 s4, s{S_W}, 1")
        k.I(f"s_add_u32 s3, s3, s4")
        k.I(f"s_lshl_b32 s3, s3, 17")
        k.I(f"s_lshl_b32 s4, s{S_HEAD}, 12")
        k.I(f"s_add_u32 s3, s3, s4")
        k.I(f"s_add_u32 s{S_CB}, s3, {CTX_OFF}")
        for db in range(4):
            base = V_S[0] + 16 * (db % 2)
            O = A_O[G] + 16 * db
            for r in range(16):
                k.I(f"v_accvgpr_read_b32 v{base+r}, a{O+r}")
            for r in range(16):
                k.I(f"v_mul_f32 v{base+r}, v{base+r}, v{Lr}")
            st = V_P[0] + 8 * (db % 2)
            for c in range(2):
                rs = (4 * c, 4 * c + 2, 8 + 4 * c, 10 + 4 * c)
                for i, r in enumerate(rs):
                    k.I(f"v_cvt_pk_bf16_f32 v{st+4*c+i}, v{base+r}, v{base+r+1}")
                k.vmem(f"buffer_store_dwordx4 v[{st+4*c}:{st+4*c+3}], v{VST}, s[{S_WS}:{S_WS+3}], s{S_CB} offen offset:{db*1024 + c*512} {aux}", "st")

def body(k, name, st, aux_ld="", aux_st="", a_sim=0):
    g = make_q(k, aux_ld)
    A = Attn(k, name, aux_ld)
    for f in g.prologue_loads(): f()
    st.stamp()
    g.prologue_reads()
    pre = {10: A.dma_group(False), 12: A.dma_group(False), 14: A.dma_group(False), 16: A.dma_group()}
    zero = [lambda r=r: k.I(f"v_accvgpr_write_b32 a{r}, 0") for r in range(128)]
    for s in range(18):
        z = zero[:8]; zero = zero[8:]
        g.step(s, extra_vec=z, extra_seq=pre.get(s, []))
    assert not zero
    k.I(f"v_mov_b32 v{V_RB}, {V_RING}")
    st.stamp()
    k.wait(vm=[("K", 0), ("K", 1), ("V", 0)])
    k.wait_all(vm=False)
    k.barrier()
    for j in range(3):
        for f in A.dma_group(): f()
    for f in A.read_k() + A.upd_k(8192): f()
    q_epilogue(k)
    for r in range(16):
        k.I(f"v_mov_b32 v{V_NEG[0]+r}, 0")
        k.I(f"v_mov_b32 v{V_NEG[1]+r}, 0")
    st.stamp()
    for m in A.qk_list(0, 0):
        m() if callable(m) else k.I(m)
    k.I("s_nop 15")
    for f in A.mask_acts(0, S_DA, "pro"): f()
    A.init_max(0, 0)
    k.barrier()
    A.simple_slot("p0a", qk=(1, 1), sm=(0, 0, 0), pv=None, kread=0, nxt=(1, 1), dmas=A.dma_group(), post=A.upd_k(8192))
    A.slot("p0b", qk=(0, 0), sm=(1, 1, 1), pv=(0, 0), vread=0, mask=(0, S_DA))
    k.I(f"s_lshl_b32 s{S_CNT}, s{S_P}, 2")
    k.I(f"s_add_u32 s{S_CNT}, s{S_CNT}, 1")
    k.label(f"{name}_p1")
    def p1(i):
        kb = 1 + i
        A.slot("p1a", qk=(1, 1), sm=(0, 0, 0), pv=(1, 1), kread=0, dmas=A.dma_group(),
               bar=(12, [("K", kb + 1), ("V", kb)]), vec_late=A.upd_v(8192))
        A.slot("p1b", qk=(0, 0), sm=(1, 1, 1), pv=(0, 0), vread=0, mask=(0, S_DA), loop=f"{name}_p1", vec_early=A.upd_k(8192))
    k.loop_body(p1, 4 * a_sim + 2)
    kb = 4 * a_sim + 3
    A.slot("p1la", qk=(1, 1), sm=(0, 0, 0), pv=(1, 1), kread=0, dmas=A.dma_group(),
           bar=(12, [("K", kb + 1), ("K", kb + 2), ("V", kb)]), vec_late=A.upd_v(8192))
    for f in A.upd_k(8192): f()
    k.I(f"s_lshl_b32 s3, s{S_P}, 7")
    k.I(f"s_sub_u32 s{S_DB}, s{S_DB}, s3")
    k.I(f"s_sub_u32 s{S_DB}, s{S_DB}, 128")
    A.slot("p1lb", qk=(1, 0), sm=(1, 1, 1), pv=(0, 0), vread=0, kread=0, mask=(0, S_DB), same_next=True)
    kb0 = 4 * a_sim + 4
    A.va -= 1
    for f in A.upd_k(8192): f()
    k.I(f"s_lshl_b32 s{S_CNT}, s{S_P}, 2")
    k.I(f"s_sub_u32 s{S_CNT}, 28, s{S_CNT}")
    k.label(f"{name}_p2")
    def p2(i):
        kb = kb0 + 2 * i
        A.slot("p2a", qk=(1, 1), sm=(1, 0, 0), pv=(1, 1), vread=0, kread=0, mask=(1, S_DB), dmas=A.dma_group(),
               bar=(12, [("K", kb + 2), ("K", kb + 3), ("V", kb - 1), ("V", kb)]), same_next=True)
        A.slot("p2b", qk=(1, 0), sm=(1, 1, 1), pv=(1, 0), vread=8192, kread=8192, mask=(0, S_DB), dmas=A.dma_group(),
               loop=f"{name}_p2", same_next=True, vec_late=A.upd_v(16384), vec_last=A.upd_k(16384))
    k.loop_body(p2, 29 - 4 * a_sim)
    kb = kb0 + 2 * (29 - 4 * a_sim)
    A.slot("p2la", qk=(1, 1), sm=(1, 0, 0), pv=(1, 1), vread=0, mask=(1, S_DB),
           bar=(0, [("V", kb - 1), ("V", kb), ("V", kb + 1)]), same_next=True)
    A.simple_slot("p2lb", qk=None, sm=(1, 1, 1), pv=(1, 0), vread=8192)
    for f in A.upd_v(16384): f()
    for f in A.read_v(0): f()
    k.I("s_nop 1")
    for m in A.pv_list(1, 1):
        m() if callable(m) else k.I(m)
    st.stamp()
    k.I("s_nop 15")
    ctx_epilogue(k, aux_st)
    return A

def emit(k, name, idx=0):
    st = Stamper(k, idx)
    kernel_head(k, name)
    k.I("s_cmp_ge_u32 s2, 256")
    k.I(f"s_cbranch_scc1 {name}_end")
    st.stamp()
    setup(k)
    addresses(k)
    snap = k.snapshot(); mark = len(k.lines); n0 = st.n
    for a_sim in range(7, -1, -1):
        del k.lines[mark:]; k.restore(snap); st.n = n0
        A = body(k, name, st, a_sim=a_sim)
    st.stamp()
    if STAMPS:
        k.wait_all(); st.stamp()
    st.flush(S_WS, S_W, V_T + 1)
    k.I("s_endpgm")
    A.emit_out_of_line()
    k.label(f"{name}_end")
    k.I("s_endpgm")
```

```python
from asmlib import Emit, lint

NAME = "parallel_sum__compressed_kv_cla__geglu_ffn__prompt"
KA_X, KA_CKV, KA_WQ, KA_WUK, KA_WUV, KA_WO, KA_BX, KA_WG, KA_WU, KA_WD, KA_OUT, KA_DBG, KA_WS = [8 * i for i in range(13)]
XN_OFF = 0
KV_OFF = 4 << 20
H_OFF = 40 << 20
CTX_OFF = 64 << 20
PART_OFF = 96 << 20
WS_SIZE = 268435456
LDS_BYTES = 163840

def srd(k, s, size):
    k.I(f"s_mov_b32 s{s+2}, {size}")
    k.I(f"s_mov_b32 s{s+3}, 0x20000")

def kernel_head(k, name):
    k.I(f".globl {name}")
    k.I(".p2align 8")
    k.I(f".type {name},@function")
    k.label(name)

def kernel_desc(name, vgpr=512, accum=256, sgpr=102):
    return f""".amdhsa_kernel {name}
  .amdhsa_next_free_vgpr {vgpr}
  .amdhsa_next_free_sgpr {sgpr}
  .amdhsa_accum_offset {accum}
  .amdhsa_group_segment_fixed_size 0
  .amdhsa_kernarg_size 104
  .amdhsa_user_sgpr_count 2
  .amdhsa_user_sgpr_kernarg_segment_ptr 1
  .amdhsa_system_sgpr_workgroup_id_x 1
.end_amdhsa_kernel
"""

def vr(base, n=4, f="v"):
    return f"{f}[{base}:{base+n-1}]" if n > 1 else f"{f}{base}"

class Reg:
    def __init__(self, f, base, n=4):
        self.f, self.base, self.n = f, base, n
    def __str__(self):
        return vr(self.base, self.n, self.f)
    def sub(self, off, n=1):
        return Reg(self.f, self.base + off, n)

def interleave(k, mfmas, fillers):
    fillers = sorted(fillers, key=lambda x: x[0])
    fi = 0
    while fi < len(fillers) and fillers[fi][0] < 0:
        fillers[fi][1](); fi += 1
    for m, ins in enumerate(mfmas):
        if callable(ins):
            ins()
        else:
            k.I(ins)
        while fi < len(fillers) and fillers[fi][0] <= m:
            fillers[fi][1](); fi += 1
    while fi < len(fillers):
        fillers[fi][1](); fi += 1

def half_wave_sum32(k, v, t1, t2):
    for ctl in ("quad_perm:[1,0,3,2]", "quad_perm:[2,3,0,1]", "row_half_mirror", "row_mirror"):
        k.I("s_nop 1")
        k.I(f"v_add_f32_dpp v{v}, v{v}, v{v} {ctl} row_mask:0xf bank_mask:0xf")
    k.I(f"v_mov_b32 v{t1}, v{v}")
    k.I(f"v_mov_b32 v{t2}, v{v}")
    k.I("s_nop 1")
    k.I(f"v_permlane16_swap_b32 v{t1}, v{t2}")
    k.I("s_nop 1")
    k.I(f"v_add_f32 v{v}, v{t1}, v{t2}")

import os
STAMPS = os.environ.get("STAMPS", "0") == "1"
STAMP_OFF = 200 << 20
class Stamper:
    def __init__(self, k, launch_idx):
        self.k, self.n, self.idx = k, 0, launch_idx
    def stamp(self):
        if not STAMPS: return
        k = self.k
        assert self.n < 8
        k.I(f"s_memrealtime s[{64+4*self.n}:{65+4*self.n}]")
        k.I(f"s_memtime s[{66+4*self.n}:{67+4*self.n}]")
        k.wait_all(vm=False, lg=True)
        self.n += 1
    def flush(self, s_ws, s_wave, vt):
        if not STAMPS: return
        k = self.k
        k.I(f"s_lshl_b32 s3, s2, 2\ns_add_u32 s3, s3, s{s_wave}\ns_lshl_b32 s3, s3, 6\ns_add_u32 s3, s3, {STAMP_OFF + self.idx*65536}")
        k.I(f"v_mov_b32 v{vt}, 0")
        for i in range(self.n):
            k.I(f"v_mov_b32 v{vt+2}, s{64+4*i}\nv_mov_b32 v{vt+3}, s{66+4*i}")
            k.I(f"s_mov_b64 exec, 1")
            k.I(f"buffer_store_dwordx2 v[{vt+2}:{vt+3}], v{vt}, s[{s_ws}:{s_ws+3}], s3 offen offset:{8*i}")
            k.I(f"s_mov_b64 exec, -1")
            k.I("s_nop 1")


class Gaps:
    def __init__(self, k, mfmas, shadow=2, vcap=20):
        self.k, self.mf = k, mfmas
        n = len(mfmas)
        self.n = n
        self.sh = [[] for _ in range(n)]
        self.ve = [[] for _ in range(n)]
        self.vc = [0] * n
        self.shadow, self.vcap = shadow, vcap
        self.alone = set()
        self.pre = []
    def reserve_alone(self, g, f):
        self.alone.add(g); self.sh[g].append(f)
    def put_shadow(self, g, f, latest=None, force=False):
        hi = self.n - 1 if latest is None else latest
        for x in range(max(g, 0), hi + 1):
            if x in self.alone: continue
            if len(self.sh[x]) < self.shadow:
                self.sh[x].append(f); return x
        for x in range(max(g, 0), hi + 1):
            if x in self.alone: continue
            if self.vc[x] + 4 <= self.vcap:
                self.sh[x].append(f); self.vc[x] += 4; return x
        x = hi
        while x in self.alone: x -= 1
        self.sh[x].append(f); self.vc[x] += 4
        return x
    def put_vec(self, g, f, cost=4, latest=None):
        hi = self.n - 1 if latest is None else latest
        for x in range(max(g, 0), hi + 1):
            if x in self.alone: continue
            if self.vc[x] + cost <= self.vcap:
                self.ve[x].append(f); self.vc[x] += cost; return x
        x = hi
        while x in self.alone: x -= 1
        self.ve[x].append(f); self.vc[x] += cost
        return x
    def emit(self):
        k = self.k
        for f in self.pre: f()
        for g, m in enumerate(self.mf):
            m() if callable(m) else k.I(m)
            for f in self.sh[g]: f()
            for f in self.ve[g]: f()
```

```python
from common import *

class Gemm:
    def __init__(self, k, name, nsteps, nfrag, acc, wbuf, nwbuf, lead, xbuf, nxset, ring,
                 w_read, w_dma, x_load, max_tiles_per_step=2, pre_tiles=2, xdist=None, wfile='a', xfile='a', bar_every=2):
        self.k = k; self.name = name; self.nsteps = nsteps; self.nfrag = nfrag; self.acc = acc
        self.wbuf = wbuf; self.nwbuf = nwbuf; self.lead = lead
        self.xbuf = xbuf; self.nxset = nxset; self.ring = ring
        self.w_read = w_read
        self.w_dma = w_dma
        self.x_load = x_load
        self.xdist = xdist if xdist is not None else nxset - 1
        self.max_tiles = max_tiles_per_step
        self.pre_tiles = pre_tiles
        self.next_tile = 0
        self.wfile = wfile; self.xfile = xfile
        self.bar_every = bar_every

    def wreg(self, n):
        return self.wbuf + 4 * (n % self.nwbuf)
    def xreg(self, s, j):
        return self.xbuf + 16 * (s % self.nxset) + 4 * j

    def read_frag(self, n):
        s, f = divmod(n, self.nfrag)
        return [lambda s=s, f=f, hh=hh, n=n: self.w_read(s, f, hh, self.wreg(n) + 2 * hh, ("F", self.name, n)) for hh in range(2)]

    def issue_tiles(self, upto):
        acts = []
        while self.next_tile <= min(upto, self.nsteps - 1):
            acts += self.w_dma(self.next_tile); self.next_tile += 1
        return acts

    def x_acts(self, s):
        acts = []
        if s < self.nsteps:
            for j in range(4):
                acts += self.x_load(s, j, self.xreg(s, j))
        return acts

    def prologue_loads(self):
        a = self.issue_tiles(0) + self.x_acts(0) + self.issue_tiles(self.pre_tiles - 1)
        for s in range(1, self.xdist):
            a += self.x_acts(s)
        return a

    def cert_tiles(self, t):
        return [("W", self.name, x) for x in range(t, min(t + self.bar_every, self.nsteps))]

    def prologue_reads(self):
        k = self.k
        k.wait(vm=self.cert_tiles(0))
        k.barrier()
        for n in range(self.lead):
            for f in self.read_frag(n): f()

    def free_upto(self, s):
        be = self.bar_every
        t = be * (s // be)
        return t - 2 + self.ring

    def step(self, s, extra_vec=(), extra_seq=()):
        k = self.k; nf = self.nfrag
        mf = []
        for f in range(nf):
            n = s * nf + f
            for j in range(4):
                D = self.acc[f, j]
                src = "0" if s == 0 else str(D)
                ins = f"v_mfma_f32_16x16x32_bf16 {D}, {self.wfile}[{self.wreg(n)}:{self.wreg(n)+3}], {self.xfile}[{self.xreg(s,j)}:{self.xreg(s,j)+3}], {src}"
                if j == 0:
                    if f == 0:
                        mf.append(lambda ins=ins, n=n: (k.wait(vm=("X", self.name, s), lg=("F", self.name, n)), k.I(ins)))
                    else:
                        mf.append(lambda ins=ins, n=n: (k.wait(lg=("F", self.name, n)), k.I(ins)))
                else:
                    mf.append(ins)
        g = Gaps(k, mf, shadow=1, vcap=4)
        nm = len(mf)
        for f in range(nf):
            nn = s * nf + f + self.lead
            if nn < self.nsteps * nf:
                acts = self.read_frag(nn)
                s2 = nn // nf
                if nn % nf == 0 and s2 % self.bar_every == 0:
                    need = self.cert_tiles(s2)
                    g.sh[4 * f - 2].append(lambda need=need: k.wait(vm=need))
                    g.reserve_alone(4 * f - 1, k.barrier)
                g.sh[4 * f].append(acts[0]); g.sh[4 * f + 1].append(acts[1])
        d = self.issue_tiles(min(self.free_upto(s), self.next_tile + self.max_tiles - 1))
        seq = self.x_acts(s + self.xdist) + d + list(extra_seq)
        free = [x for x in range(nm) if not g.sh[x] and x not in g.alone and x % 4 != 3] + [x for x in range(nm) if not g.sh[x] and x not in g.alone and x % 4 == 3]
        free.sort()
        for i, f in enumerate(seq):
            if len(seq) <= len(free):
                x = free[(i * len(free)) // len(seq)]
            else:
                x = (i * nm) // len(seq)
                while x in g.alone: x += 1
            g.sh[x].append(f)
        ev = list(extra_vec)
        for i, f in enumerate(ev):
            x = (i * nm) // len(ev)
            while x in g.alone: x += 1
            g.ve[x].append(f)
        g.emit()
```

```python
from common import *
from engine import Gemm

S_WD, S_WO, S_WS, S_X, S_OUT = 8, 12, 20, 24, 16
S_W, S_KS, S_MB, S_NB = 28, 29, 30, 31
S_WROW, S_WM0, S_WM4, S_HB, S_T, S_T2, S_CB, S_DEL, S_EXH, S_WROWC, S_PB = 32, 33, 35, 34, 36, 37, 38, 39, 40, 42, 43
V_L, V_WD, V_WR, V_XH, V_XS, V_XC, V_L16, V_T = 0, 1, 6, 9, 13, 17, 21, 22
ACC_V0 = 32
A_X, A_W = 0, 64
NSTEP, RING, SLOT = 34, 8, 18432
PART_KS = 2048 * 576 * 4

def acc_map():
    return {(f, j): Reg("v", ACC_V0 + 16 * f + 4 * j) for f in range(9) for j in range(4)}

def step_kind(s):
    if s < 18:
        p, i = divmod(s, 9)
        return ("h", p, i) if i < 8 else ("s", p)
    hd, db = divmod(s - 18, 4)
    return ("c", hd, db)

def setup(k):
    k.I(f"s_load_dwordx2 s[{S_WD}:{S_WD+1}], s[0:1], {KA_WD}")
    k.I(f"s_load_dwordx2 s[{S_WO}:{S_WO+1}], s[0:1], {KA_WO}")
    k.I(f"s_load_dwordx2 s[{S_WS}:{S_WS+1}], s[0:1], {KA_WS}")
    k.I(f"v_lshrrev_b32 v{V_T}, 6, v0")
    k.I(f"v_and_b32 v{V_L}, 63, v0")
    k.I(f"v_readfirstlane_b32 s{S_W}, v{V_T}")
    k.I("s_and_b32 s3, s2, 7")
    k.I("s_lshr_b32 s4, s2, 3")
    k.I(f"s_and_b32 s{S_KS}, s3, 3")
    k.I("s_lshr_b32 s3, s3, 2")
    k.I("s_lshl_b32 s3, s3, 3")
    k.I("s_lshr_b32 s5, s4, 2")
    k.I(f"s_add_u32 s{S_MB}, s3, s5")
    k.I(f"s_and_b32 s{S_NB}, s4, 3")
    k.wait_all(vm=False)
    srd(k, S_WD, 4608 * 576 * 2)
    srd(k, S_WO, 4096 * 576 * 2)
    srd(k, S_WS, WS_SIZE)

def addresses(k):
    a, b, c, d = V_T, V_T + 1, V_T + 2, V_T + 3
    L = V_L
    k.I(f"s_lshr_b32 s3, s{S_W}, 1")
    k.I(f"s_mul_i32 s{S_WM0}, s3, 9216")
    k.I(f"s_and_b32 s4, s{S_W}, 1")
    k.I(f"s_cmp_eq_u32 s4, 0")
    k.I(f"s_cselect_b32 s{S_EXH}, -1, 0")
    k.I(f"s_cselect_b32 s{S_EXH+1}, 0, -1")
    k.I(f"s_mul_i32 s{S_DEL}, s4, {128*1152}")
    k.I(f"s_mul_i32 s5, s4, 320")
    k.I(f"s_mov_b32 s6, 3641")
    for q in range(5):
        if q < 4:
            k.I(f"v_add_u32 v{a}, s5, v{L}")
            if q: k.I(f"v_add_u32 v{a}, {64*q}, v{a}")
        else:
            k.I(f"v_add_u32 v{a}, 256, v{L}")
        k.I(f"v_mul_u32_u24 v{b}, s6, v{a}")
        k.I(f"v_lshrrev_b32 v{b}, 16, v{b}")
        k.I(f"v_mul_u32_u24 v{c}, 18, v{b}")
        k.I(f"v_sub_u32 v{c}, v{a}, v{c}")
        k.I(f"v_mul_u32_u24 v{b}, 1152, v{b}")
        k.I(f"v_lshl_add_u32 v{V_WD+q}, v{c}, 4, v{b}")
        if 0 < q < 4:
            k.I(f"v_subrev_u32 v{V_WD+q}, {1024*q}, v{V_WD+q}")
    k.I(f"s_add_u32 s{S_WM4}, s{S_WM0}, 4096")
    k.I(f"s_mul_i32 s4, s4, 5120")
    k.I(f"s_add_u32 s{S_WM0}, s{S_WM0}, s4")
    k.I(f"s_lshl_b32 s4, s{S_KS}, 2")
    k.I(f"s_lshl_b32 s5, s3, 1")
    k.I(f"s_add_u32 s4, s4, s5")
    k.I(f"s_mul_i32 s5, s4, {288*1152}")
    k.I(f"s_mul_i32 s6, s{S_NB}, 288")
    k.I(f"s_add_u32 s{S_WROW}, s5, s6")
    k.I(f"s_lshl_b32 s5, s4, 1")
    k.I(f"s_mul_i32 s7, s5, {128*1152}")
    k.I(f"s_add_u32 s{S_WROWC}, s7, s6")
    k.I(f"v_lshrrev_b32 v{a}, 4, v{L}")
    k.I(f"v_and_b32 v{b}, 15, v{L}")
    k.I(f"v_lshrrev_b32 v{c}, 2, v{b}")
    k.I(f"v_lshl_add_u32 v{c}, v{a}, 2, v{c}")
    k.I(f"v_mul_u32_u24 v{c}, 288, v{c}")
    k.I(f"v_and_b32 v{b}, 3, v{b}")
    k.I(f"v_lshl_add_u32 v{c}, v{b}, 3, v{c}")
    k.I(f"s_mul_i32 s6, s3, 9216")
    k.I(f"v_add_u32 v{V_WR}, s6, v{c}")
    k.I(f"v_add_u32 v{V_WR+1}, {3*SLOT}, v{V_WR}")
    k.I(f"v_add_u32 v{V_WR+2}, {6*SLOT}, v{V_WR}")
    k.I(f"v_lshlrev_b32 v{V_L16}, 4, v{L}")
    k.I(f"v_lshlrev_b32 v{a}, 3, v{L}")
    for j in range(4):
        k.I(f"v_add_u32 v{V_XH+j}, {147456*j}, v{V_L16}")
        k.I(f"v_add_u32 v{V_XS+j}, {147456*j}, v{a}")
        k.I(f"v_add_u32 v{V_XC+j}, {131072*j}, v{V_L16}")
    k.I(f"s_lshl_b32 s6, s{S_MB}, 3")
    k.I(f"s_and_b32 s7, s{S_W}, 1")
    k.I(f"s_lshl_b32 s7, s7, 2")
    k.I(f"s_add_u32 s6, s6, s7")
    k.I(f"s_mul_i32 s7, s6, 147456")
    k.I(f"s_mul_i32 s4, s4, 9216")
    k.I(f"s_add_u32 s7, s7, s4")
    k.I(f"s_add_u32 s{S_HB}, s7, {H_OFF}")
    k.I(f"s_lshl_b32 s7, s6, 17")
    k.I(f"s_lshl_b32 s5, s5, 12")
    k.I(f"s_add_u32 s7, s7, s5")
    k.I(f"s_add_u32 s{S_CB}, s7, {CTX_OFF}")
    k.I(f"s_lshl_b32 s4, s{S_MB}, 2")
    k.I(f"s_add_u32 s4, s4, s{S_NB}")
    k.I(f"s_lshl_b32 s4, s4, 2")
    k.I(f"s_and_b32 s5, s{S_W}, 1")
    k.I(f"s_lshl_b32 s5, s5, 1")
    k.I(f"s_add_u32 s4, s4, s5")
    k.I(f"s_add_u32 s4, s4, s3")
    k.I(f"s_mul_i32 s4, s4, 18432")
    k.I(f"s_mul_i32 s5, s{S_KS}, {PART_KS}")
    k.I(f"s_add_u32 s4, s4, s5")
    k.I(f"s_add_u32 s{S_PB}, s4, {PART_OFF}")

def make(k, aux=""):
    def w_read(s, f, hh, dst, tag):
        slot = s % RING
        off = (slot % 3) * SLOT + hh * 4608 + f * 32
        k.ds(f"ds_read_b64_tr_b16 a[{dst}:{dst+1}], v{V_WR + slot//3} offset:{off}", tag, ("W", slot))
    def w_dma(s):
        slot = s % RING; acts = []
        kind = step_kind(s)
        acts.append(lambda: k.I(f"s_add_u32 m0, s{S_WM0}, {slot*SLOT}"))
        if kind[0] == "h":
            row = 288 * kind[1] + 144 * (kind[2] // 4) + 32 * (kind[2] % 4)
            S = S_WD
            acts.append(lambda: k.I(f"s_add_u32 s{S_T}, s{S_WROW}, {row*1152}"))
        elif kind[0] == "s":
            row = 288 * kind[1] + 128
            S = S_WD
            acts.append(lambda: k.I(f"s_add_u32 s{S_T}, s{S_WROW}, {row*1152}"))
            acts.append(lambda: k.I(f"s_add_u32 s{S_T}, s{S_T}, s{S_DEL}"))
        else:
            row = 128 * kind[1] + 32 * kind[2]
            S = S_WO
            acts.append(lambda: k.I(f"s_add_u32 s{S_T}, s{S_WROWC}, {row*1152}"))
        for q in range(4):
            acts.append(lambda q=q: k.dma(f"buffer_load_dwordx4 v{V_WD+q}, s[{S}:{S+3}], s{S_T} offen offset:{1024*q} lds", ("W", "fin", s), ("W", slot)))
        acts.append(lambda: k.I(f"s_add_u32 m0, s{S_WM4}, {slot*SLOT}"))
        def half():
            k.I(f"s_mov_b64 exec, s[{S_EXH}:{S_EXH+1}]")
            k.dma(f"buffer_load_dwordx4 v{V_WD+4}, s[{S}:{S+3}], s{S_T} offen lds", ("W", "fin", s), ("W", slot))
            k.I("s_mov_b64 exec, -1")
        acts.append(half)
        return acts
    def x_load(s, j, dst):
        kind = step_kind(s); acts = []
        tag = ("X", "fin", s)
        if kind[0] == "h":
            off = 9216 * kind[1] + 1024 * kind[2]
            if j == 0: acts.append(lambda: k.I(f"s_add_u32 s{S_T2}, s{S_HB}, {off}"))
            acts.append(lambda: k.vmem(f"buffer_load_dwordx4 a[{dst}:{dst+3}], v{V_XH+j}, s[{S_WS}:{S_WS+3}], s{S_T2} offen {aux}", tag))
        elif kind[0] == "s":
            off = 9216 * kind[1] + 8192
            if j == 0: acts.append(lambda: k.I(f"s_add_u32 s{S_T2}, s{S_HB}, {off}"))
            acts.append(lambda: k.vmem(f"buffer_load_dwordx2 a[{dst}:{dst+1}], v{V_XS+j}, s[{S_WS}:{S_WS+3}], s{S_T2} offen {aux}", tag))
            acts.append(lambda: k.vmem(f"buffer_load_dwordx2 a[{dst+2}:{dst+3}], v{V_XS+j}, s[{S_WS}:{S_WS+3}], s{S_T2} offen offset:512 {aux}", tag))
        else:
            off = 4096 * kind[1] + 1024 * kind[2]
            if j == 0: acts.append(lambda: k.I(f"s_add_u32 s{S_T2}, s{S_CB}, {off}"))
            acts.append(lambda: k.vmem(f"buffer_load_dwordx4 a[{dst}:{dst+3}], v{V_XC+j}, s[{S_WS}:{S_WS+3}], s{S_T2} offen {aux}", tag))
        return acts
    return Gemm(k, "fin", NSTEP, 9, acc_map(), A_W, 6, 4, A_X, 4, RING, w_read, w_dma, x_load)

def wave_exchange(k, g, role):
    acc = g.acc
    keep = (2 * role, 2 * role + 1); give = (2 * (1 - role), 2 * (1 - role) + 1)
    a = V_T
    k.I(f"s_mul_i32 s3, s{S_W}, 18432")
    k.I(f"v_add_u32 v{a}, s3, v{V_L16}")
    k.I(f"s_xor_b32 s4, s{S_W}, 2")
    k.I(f"s_mul_i32 s3, s4, 18432")
    k.I(f"v_add_u32 v{a+1}, s3, v{V_L16}")
    for jj, j in enumerate(give):
        for f in range(9):
            r = acc[f, j].base
            k.ds(f"ds_write_b128 v{a}, v[{r}:{r+3}] offset:{(jj*9+f)*1024}", "xw")
    k.wait_all(vm=False)
    k.barrier()
    for jj, j in enumerate(keep):
        for f in range(9):
            r = acc[f, give[jj]].base
            k.ds(f"ds_read_b128 v[{r}:{r+3}], v{a+1} offset:{(jj*9+f)*1024}", ("xr", jj, f))
    return keep, give

def store_partials(k, g, role, aux):
    acc = g.acc
    keep, give = wave_exchange(k, g, role)
    for jj, j in enumerate(keep):
        for f in range(9):
            r, p = acc[f, j].base, acc[f, give[jj]].base
            k.wait(lg=("xr", jj, f))
            for i in range(4):
                k.I(f"v_add_f32 v{r+i}, v{r+i}, v{p+i}")
            b = jj * 9 + f
            if b % 4 == 0:
                k.I(f"s_add_u32 s{S_T}, s{S_PB}, {b*1024}")
            k.vmem(f"buffer_store_dwordx4 v[{r}:{r+3}], v{V_L16}, s[{S_WS}:{S_WS+3}], s{S_T} offen offset:{(b%4)*1024} {aux}", "st")

def emit(k, name, idx=0):
    st = Stamper(k, idx)
    kernel_head(k, name)
    k.I("s_cmp_ge_u32 s2, 256")
    k.I(f"s_cbranch_scc1 {name}_end")
    st.stamp()
    setup(k)
    addresses(k)
    g = make(k)
    for f in g.prologue_loads(): f()
    st.stamp()
    g.prologue_reads()
    st.stamp()
    for s in range(NSTEP):
        g.step(s)
    st.stamp()
    k.wait_all(vm=False)
    k.barrier()
    k.I(f"s_cmp_ge_u32 s{S_W}, 2")
    k.I(f"s_cbranch_scc1 {name}_r1")
    snap = k.snapshot(); n0 = st.n
    for role in range(2):
        if role == 1:
            k.label(f"{name}_r1"); k.restore(snap); st.n = n0
        store_partials(k, g, role, "")
        st.stamp()
        if STAMPS:
            k.wait_all(); st.stamp()
        st.flush(S_WS, S_W, V_T + 2)
        k.I("s_endpgm")
    k.label(f"{name}_end")
    k.I("s_endpgm")

R_W = 28
def emit_reduce(k, name, idx=0):
    kernel_head(k, name)
    k.I("s_cmp_ge_u32 s2, 256")
    k.I(f"s_cbranch_scc1 {name}_end")
    k.I(f"s_load_dwordx2 s[{S_X}:{S_X+1}], s[0:1], {KA_X}")
    k.I(f"s_load_dwordx2 s[{S_OUT}:{S_OUT+1}], s[0:1], {KA_OUT}")
    k.I(f"s_load_dwordx2 s[{S_WS}:{S_WS+1}], s[0:1], {KA_WS}")
    k.I(f"v_lshrrev_b32 v1, 6, v0")
    k.I(f"v_and_b32 v0, 63, v0")
    k.I(f"v_readfirstlane_b32 s{R_W}, v1")
    k.wait_all(vm=False)
    srd(k, S_X, 2048 * 576 * 2); srd(k, S_OUT, 2048 * 576 * 2); srd(k, S_WS, WS_SIZE)
    k.I("s_lshr_b32 s4, s2, 2")
    k.I("s_and_b32 s5, s2, 3")
    reduce_body(k, name, "s4", "s5", R_W, "")
    k.label(f"{name}_end")
    k.I("s_endpgm")

def reduce_body(k, name, s_tile, s_g, s_part, aux):
    k.I(f"s_mul_i32 s6, s{s_part}, 5")
    k.I(f"s_cmp_eq_u32 s{s_part}, 3")
    k.I(f"s_cselect_b32 s7, 1, 0")
    k.I(f"s_sub_u32 s6, s6, s7")
    k.I(f"s_lshl_b32 s7, {s_tile}, 2")
    k.I(f"s_add_u32 s7, s7, {s_g}")
    k.I(f"s_mul_i32 s7, s7, 18432")
    k.I(f"s_add_u32 s32, s7, {PART_OFF}")
    k.I(f"s_lshr_b32 s33, {s_tile}, 2")
    k.I(f"s_and_b32 s34, {s_tile}, 3")
    k.I(f"s_lshl_b32 s33, s33, 7")
    k.I(f"s_lshl_b32 s35, {s_g}, 5")
    k.I(f"s_add_u32 s33, s33, s35")
    k.I(f"s_mul_i32 s34, s34, 144")
    k.I("v_lshlrev_b32 v1, 4, v0")
    k.I("v_and_b32 v2, 15, v0\nv_mul_u32_u24 v2, 1152, v2\nv_lshrrev_b32 v3, 4, v0\nv_lshl_add_u32 v2, v3, 3, v2")
    for i in range(5):
        if i == 4:
            k.I(f"s_cmp_ge_u32 s{s_part}, 2")
            k.I(f"s_cbranch_scc1 {name}_four")
        k.I(f"s_add_u32 s36, s6, {i}")
        k.I(f"s_cmp_ge_u32 s36, 9")
        k.I(f"s_cselect_b32 s37, 1, 0")
        k.I(f"s_mul_i32 s38, s37, 9")
        k.I(f"s_sub_u32 s38, s36, s38")
        k.I(f"s_lshl_b32 s36, s36, 10")
        k.I(f"s_add_u32 s36, s36, s32")
        base = 8 + 20 * i
        for ks in range(4):
            k.vmem(f"buffer_load_dwordx4 v[{base+4*ks}:{base+4*ks+3}], v1, s[{S_WS}:{S_WS+3}], s36 offen {aux}", ("p", i))
            if ks < 3: k.I(f"s_add_u32 s36, s36, {PART_KS}")
        k.I(f"s_lshl_b32 s37, s37, 4")
        k.I(f"s_add_u32 s37, s37, s33")
        k.I(f"s_mul_i32 s37, s37, 1152")
        k.I(f"s_lshl_b32 s38, s38, 4")
        k.I(f"s_add_u32 s38, s38, s34")
        k.I(f"s_lshl_b32 s38, s38, 1")
        k.I(f"s_add_u32 s{40+i}, s37, s38")
        k.vmem(f"buffer_load_dwordx2 v[{base+16}:{base+17}], v2, s[{S_X}:{S_X+3}], s{40+i} offen", ("p", i))
    snap = k.snapshot()
    for n in (5, 4):
        if n == 4:
            k.label(f"{name}_four"); k.restore(snap)
            k.vm = [t for t in k.vm if t != ("p", 4)]
        for i in range(n):
            base = 8 + 20 * i
            k.wait(vm=("p", i))
            x = base + 16
            k.I(f"v_lshlrev_b32 v4, 16, v{x}\nv_and_b32 v5, 0xffff0000, v{x}\nv_lshlrev_b32 v6, 16, v{x+1}\nv_and_b32 v7, 0xffff0000, v{x+1}")
            for r in range(4):
                k.I(f"v_add_f32 v{base+r}, v{base+r}, v{base+4+r}")
                k.I(f"v_add_f32 v{base+8+r}, v{base+8+r}, v{base+12+r}")
            for r in range(4):
                k.I(f"v_add_f32 v{base+r}, v{base+r}, v{base+8+r}")
            for r in range(4):
                k.I(f"v_add_f32 v{base+r}, v{base+r}, v{4+r}")
            k.I(f"v_cvt_pk_bf16_f32 v{base}, v{base}, v{base+1}")
            k.I(f"v_cvt_pk_bf16_f32 v{base+1}, v{base+2}, v{base+3}")
            k.vmem(f"buffer_store_dwordx2 v[{base}:{base+1}], v2, s[{S_OUT}:{S_OUT+3}], s{40+i} offen", "st")
        k.I("s_endpgm") if n == 5 else None
```

```python
from common import *
from engine import Gemm

S_WG, S_WU, S_WS = 8, 12, 20
S_W, S_FB, S_MB = 28, 29, 30
S_WBASE, S_WM0, S_XBASE, S_T, S_T2, S_HB, S_EXH, S_PART = 32, 33, 34, 36, 37, 38, 40, 16
V_L, V_WD, V_WR, V_XL, V_ST, V_ST8, V_T = 0, 1, 6, 9, 13, 14, 15
ACC_V0 = 28
A_X, A_W, A_ACC = 0, 64, 96
NSTEP, RING, SLOT = 18, 8, 18432

def acc_map():
    m = {}; nv = 0; na = 0
    for f in range(18):
        for j in range(4):
            in_a = (f >= 14) and not (f == 14 and j == 0)
            if in_a:
                m[f, j] = Reg("a", A_ACC + 4 * na); na += 1
            else:
                m[f, j] = Reg("v", ACC_V0 + 4 * nv); nv += 1
    assert nv == 57 and na == 15, (nv, na)
    return m

def setup(k):
    k.I(f"s_load_dwordx2 s[{S_WG}:{S_WG+1}], s[0:1], {KA_WG}")
    k.I(f"s_load_dwordx2 s[{S_WU}:{S_WU+1}], s[0:1], {KA_WU}")
    k.I(f"s_load_dwordx2 s[{S_WS}:{S_WS+1}], s[0:1], {KA_WS}")
    k.I(f"v_lshrrev_b32 v{V_T}, 6, v0")
    k.I(f"v_and_b32 v{V_L}, 63, v0")
    k.I(f"v_readfirstlane_b32 s{S_W}, v{V_T}")
    k.I("s_and_b32 s3, s2, 7")
    k.I("s_lshr_b32 s4, s2, 3")
    k.I("s_lshl_b32 s3, s3, 2")
    k.I("s_and_b32 s5, s4, 3")
    k.I(f"s_add_u32 s{S_FB}, s3, s5")
    k.I(f"s_lshr_b32 s{S_MB}, s4, 2")
    k.wait_all(vm=False)
    srd(k, S_WS, WS_SIZE)

def addresses(k):
    a, b, c, d = V_T, V_T + 1, V_T + 2, V_T + 3
    L = V_L
    k.I(f"s_lshr_b32 s3, s{S_W}, 1")
    k.I(f"s_cmp_eq_u32 s3, 0")
    k.I(f"s_cselect_b32 s{S_PART}, s{S_WG}, s{S_WU}")
    k.I(f"s_cselect_b32 s{S_PART+1}, s{S_WG+1}, s{S_WU+1}")
    srd(k, S_PART, 576 * 4608 * 2)
    k.I(f"s_mul_i32 s{S_WM0}, s3, 9216")
    k.I(f"s_and_b32 s4, s{S_W}, 1")
    k.I(f"s_cmp_eq_u32 s4, 0")
    k.I(f"s_cselect_b32 s{S_EXH}, -1, 0")
    k.I(f"s_cselect_b32 s{S_EXH+1}, 0, -1")
    k.I(f"s_mul_i32 s5, s4, 320")
    k.I(f"s_mov_b32 s6, 3641")
    for q in range(5):
        if q < 4:
            k.I(f"v_add_u32 v{a}, s5, v{L}")
            if q: k.I(f"v_add_u32 v{a}, {64*q}, v{a}")
        else:
            k.I(f"v_add_u32 v{a}, 256, v{L}")
        k.I(f"v_mul_u32_u24 v{b}, s6, v{a}")
        k.I(f"v_lshrrev_b32 v{b}, 16, v{b}")
        k.I(f"v_mul_u32_u24 v{c}, 18, v{b}")
        k.I(f"v_sub_u32 v{c}, v{a}, v{c}")
        k.I(f"v_mul_u32_u24 v{b}, 9216, v{b}")
        k.I(f"v_lshl_add_u32 v{V_WD+q}, v{c}, 4, v{b}")
        if 0 < q < 4:
            k.I(f"v_subrev_u32 v{V_WD+q}, {1024*q}, v{V_WD+q}")
    k.I(f"s_mul_i32 s{S_WBASE}, s{S_FB}, 288")
    k.I(f"s_mul_i32 s4, s4, 5120")
    k.I(f"s_add_u32 s{S_T2}, s{S_WM0}, 4096")
    k.I(f"s_mov_b32 s35, s{S_T2}")
    k.I(f"s_add_u32 s{S_WM0}, s{S_WM0}, s4")
    k.I(f"v_lshrrev_b32 v{a}, 4, v{L}")
    k.I(f"v_and_b32 v{b}, 15, v{L}")
    k.I(f"v_lshrrev_b32 v{c}, 2, v{b}")
    k.I(f"v_lshl_add_u32 v{c}, v{a}, 2, v{c}")
    k.I(f"v_mul_u32_u24 v{c}, 288, v{c}")
    k.I(f"v_and_b32 v{b}, 3, v{b}")
    k.I(f"v_lshl_add_u32 v{V_WR}, v{b}, 3, v{c}")
    k.I(f"v_add_u32 v{V_WR+1}, {3*SLOT}, v{V_WR}")
    k.I(f"v_add_u32 v{V_WR+2}, {6*SLOT}, v{V_WR}")
    k.I(f"v_lshlrev_b32 v{V_XL}, 4, v{L}")
    for j in range(1, 4):
        k.I(f"v_add_u32 v{V_XL+j}, {18432*j}, v{V_XL}")
    k.I(f"s_lshl_b32 s3, s{S_MB}, 4")
    k.I(f"s_lshl_b32 s4, s{S_W}, 2")
    k.I(f"s_add_u32 s3, s3, s4")
    k.I(f"s_mul_i32 s{S_XBASE}, s3, 18432")
    if XN_OFF: k.I(f"s_add_u32 s{S_XBASE}, s{S_XBASE}, {XN_OFF}")
    k.I(f"v_lshlrev_b32 v{V_ST}, 4, v{L}")
    k.I(f"v_lshlrev_b32 v{V_ST8}, 3, v{L}")
    k.I(f"s_mul_i32 s3, s3, 147456")
    k.I(f"s_lshr_b32 s4, s{S_FB}, 1")
    k.I(f"s_mul_i32 s4, s4, 9216")
    k.I(f"s_add_u32 s3, s3, s4")
    k.I(f"s_add_u32 s{S_HB}, s3, {H_OFF}")
    k.I(f"s_and_b32 s39, s{S_FB}, 1")

def make(k, aux=""):
    def w_read(s, f, hh, dst, tag):
        slot = s % RING
        part, fb = divmod(f, 9)
        off = (slot % 3) * SLOT + part * 9216 + hh * 4608 + fb * 32
        k.ds(f"ds_read_b64_tr_b16 a[{dst}:{dst+1}], v{V_WR + slot//3} offset:{off}", tag, ("W", slot))
    def w_dma(s):
        slot = s % RING; acts = []
        acts.append(lambda: k.I(f"s_add_u32 m0, s{S_WM0}, {slot*SLOT}"))
        acts.append(lambda: k.I(f"s_add_u32 s{S_T}, s{S_WBASE}, {s*32*9216}"))
        for q in range(4):
            acts.append(lambda q=q: k.dma(f"buffer_load_dwordx4 v{V_WD+q}, s[{S_PART}:{S_PART+3}], s{S_T} offen offset:{1024*q} lds", ("W", "gu", s), ("W", slot)))
        acts.append(lambda: k.I(f"s_add_u32 m0, s35, {slot*SLOT}"))
        def half():
            k.I(f"s_mov_b64 exec, s[{S_EXH}:{S_EXH+1}]")
            k.dma(f"buffer_load_dwordx4 v{V_WD+4}, s[{S_PART}:{S_PART+3}], s{S_T} offen lds", ("W", "gu", s), ("W", slot))
            k.I("s_mov_b64 exec, -1")
        acts.append(half)
        return acts
    def x_load(s, j, dst):
        acts = []
        if j == 0:
            acts.append(lambda: k.I(f"s_add_u32 s{S_T2}, s{S_XBASE}, {s*1024}"))
        acts.append(lambda: k.vmem(f"buffer_load_dwordx4 a[{dst}:{dst+3}], v{V_XL+j}, s[{S_WS}:{S_WS+3}], s{S_T2} offen {aux}", ("X", "gu", s)))
        return acts
    return Gemm(k, "gu", NSTEP, 18, acc_map(), A_W, 6, 4, A_X, 4, RING, w_read, w_dma, x_load)

C0 = -2.0 * 0.7978845608028654 * 1.4426950408889634
C1 = C0 * 0.044715

def epilogue(k, g, aux=""):
    acc = g.acc
    T = V_T
    k.I(f"v_mov_b32 v24, {C0!r}\nv_mov_b32 v25, {C0!r}\nv_mov_b32 v26, {C1!r}\nv_mov_b32 v27, {C1!r}")
    k.I(f"s_lshl_b32 s4, s39, 12")
    k.I(f"s_add_u32 s5, s{S_HB}, s4")
    k.I(f"s_lshl_b32 s4, s39, 9")
    k.I(f"s_add_u32 s6, s{S_HB}, s4")
    k.I(f"s_add_u32 s6, s6, 8192")
    def gelu_block(fb, j):
        G, U = acc[fb, j], acc[9 + fb, j]
        assert G.f == "v"
        ub = U.base
        if U.f == "a":
            for r in range(4):
                k.I(f"v_accvgpr_read_b32 v{20+r}, a{U.base+r}")
            ub = 20
        for h in range(2):
            g0 = G.base + 2 * h; u0 = ub + 2 * h
            gp = f"v[{g0}:{g0+1}]"; up = f"v[{u0}:{u0+1}]"
            k.I(f"v_pk_mul_f32 v[16:17], {gp}, {gp}")
            k.I(f"v_pk_mul_f32 {up}, {gp}, {up}")
            k.I(f"v_pk_fma_f32 v[16:17], v[16:17], v[26:27], v[24:25]")
            k.I(f"v_pk_mul_f32 v[16:17], v[16:17], {gp}")
            k.I(f"v_exp_f32 v16, v16")
            k.I(f"v_exp_f32 v17, v17")
            k.I("s_nop 0")
            k.I(f"v_pk_add_f32 v[16:17], v[16:17], 1.0 op_sel_hi:[1,0]")
            k.I(f"v_rcp_f32 v16, v16")
            k.I(f"v_rcp_f32 v17, v17")
            k.I("s_nop 0")
            k.I(f"v_pk_mul_f32 v[16:17], v[16:17], {up}")
            k.I(f"v_cvt_pk_bf16_f32 v{G.base + h}, v16, v17" if h == 0 else f"v_cvt_pk_bf16_f32 v{G.base + 1}, v16, v17")
    for j in range(4):
        for i in range(4):
            X, Y = acc[2*i, j], acc[2*i+1, j]
            gelu_block(2*i, j); gelu_block(2*i+1, j)
            k.I(f"v_mov_b32 v{X.base+2}, v{Y.base}")
            k.I(f"v_mov_b32 v{X.base+3}, v{Y.base+1}")
            k.I(f"s_add_u32 s{S_T}, s5, {j*147456 + i*1024}")
            k.vmem(f"buffer_store_dwordx4 v[{X.base}:{X.base+3}], v{V_ST}, s[{S_WS}:{S_WS+3}], s{S_T} offen {aux}", "st")
        X = acc[8, j]
        gelu_block(8, j)
        k.I(f"s_add_u32 s{S_T}, s6, {j*147456}")
        k.vmem(f"buffer_store_dwordx2 v[{X.base}:{X.base+1}], v{V_ST8}, s[{S_WS}:{S_WS+3}], s{S_T} offen {aux}", "st")

def emit(k, name, idx=0):
    st = Stamper(k, idx)
    kernel_head(k, name)
    k.I("s_cmp_ge_u32 s2, 256")
    k.I(f"s_cbranch_scc1 {name}_end")
    st.stamp()
    setup(k)
    addresses(k)
    g = make(k)
    for f in g.prologue_loads(): f()
    st.stamp()
    g.prologue_reads()
    st.stamp()
    for s in range(NSTEP):
        g.step(s)
    st.stamp()
    epilogue(k, g)
    st.stamp()
    if STAMPS:
        k.wait_all(); st.stamp()
    st.flush(S_WS, S_W, V_T + 1)
    k.label(f"{name}_end")
    k.I("s_endpgm")
```

```python
from common import *

C_RING, W_RING = 0, 98304
S_CKV, S_WUK, S_WUV, S_WS, S_X = 8, 12, 16, 20, 24
S_W, S_HEAD, S_KB = 28, 29, 30
S_WBASE, S_WM0, S_CBASE, S_CM0, S_T, S_T2, S_ST = 32, 33, 34, 35, 36, 37, 38
V_L, V_WD, V_CD, V_WR, V_CR, V_CR2, V_ST, V_T = 0, 1, 2, 4, 12, 14, 16, 17
ACC_V0 = 24
A_C, A_W, A_ACC = 0, 64, 128

def acc_map(role):
    m = {}; nv = 0; na = 0
    for db in range(8):
        for kb in range(8):
            in_a = (db == 7 and kb >= 2) if role == "K" else (kb == 7 and db >= 2)
            if in_a:
                m[db, kb] = Reg("a", A_ACC + 4 * na); na += 1
            else:
                m[db, kb] = Reg("v", ACC_V0 + 4 * nv); nv += 1
    assert nv == 58 and na == 6
    return m

def setup(k):
    k.I(f"s_load_dwordx2 s[{S_CKV}:{S_CKV+1}], s[0:1], {KA_CKV}")
    k.I(f"s_load_dwordx2 s[{S_WUK}:{S_WUK+1}], s[0:1], {KA_WUK}")
    k.I(f"s_load_dwordx2 s[{S_WUV}:{S_WUV+1}], s[0:1], {KA_WUV}")
    k.I(f"s_load_dwordx2 s[{S_WS}:{S_WS+1}], s[0:1], {KA_WS}")
    k.I(f"s_load_dwordx2 s[{S_X}:{S_X+1}], s[0:1], {KA_X}")
    k.I(f"v_lshrrev_b32 v{V_T}, 6, v0")
    k.I(f"v_and_b32 v{V_L}, 63, v0")
    k.I(f"v_readfirstlane_b32 s{S_W}, v{V_T}")
    k.I("s_and_b32 s3, s2, 7")
    k.I("s_lshr_b32 s4, s2, 3")
    k.I("s_lshl_b32 s3, s3, 2")
    k.I("s_and_b32 s5, s4, 3")
    k.I(f"s_add_u32 s{S_HEAD}, s3, s5")
    k.I(f"s_lshr_b32 s{S_KB}, s4, 2")
    k.I("s_waitcnt lgkmcnt(0)")
    srd(k, S_CKV, 2048 * 512 * 2)
    srd(k, S_WUK, 512 * 4096 * 2)
    srd(k, S_WUV, 512 * 4096 * 2)
    srd(k, S_WS, WS_SIZE)
    srd(k, S_X, 2048 * 576 * 2)

def ln_loads(k):
    t = V_T
    k.I(f"s_lshl_b32 s3, s2, 3")
    k.I(f"s_lshl_b32 s4, s{S_W}, 1")
    k.I(f"s_add_u32 s3, s3, s4")
    k.I(f"v_lshrrev_b32 v{t}, 5, v{V_L}")
    k.I(f"v_add_u32 v{t}, s3, v{t}")
    k.I(f"v_and_b32 v{t+1}, 31, v{V_L}")
    k.I(f"v_mul_u32_u24 v{t+2}, 1152, v{t}")
    k.I(f"v_lshl_add_u32 v{t+2}, v{t+1}, 6, v{t+2}")
    k.I(f"v_mov_b32 v{t+3}, 0x10000000")
    k.I(f"v_cmp_gt_u32 vcc, 18, v{t+1}")
    k.I("s_nop 1")
    k.I(f"v_cndmask_b32 v{t+2}, v{t+3}, v{t+2}, vcc")
    for q in range(4):
        k.vmem(f"buffer_load_dwordx4 v[{24+4*q}:{27+4*q}], v{t+2}, s[{S_X}:{S_X+3}], 0 offen offset:{16*q}", "lnx")
    k.I(f"v_lshrrev_b32 v{t+4}, 4, v{t}")
    k.I(f"v_mul_u32_u24 v{t+4}, 18432, v{t+4}")
    k.I(f"v_lshl_add_u32 v{t+4}, v{t+1}, 10, v{t+4}")
    k.I(f"v_and_b32 v{t+5}, 15, v{t}")
    k.I(f"v_lshl_add_u32 v{t+4}, v{t+5}, 4, v{t+4}")
    if XN_OFF:
        k.I(f"v_add_u32 v{t+4}, {XN_OFF}, v{t+4}")
    k.I(f"v_cndmask_b32 v{t+4}, v{t+3}, v{t+4}, vcc")
    k.I(f"v_cndmask_b32 v{t+5}, 0, 1.0, vcc")

def ln_compute(k):
    t = V_T; E = 40; S = 72
    k.wait(vm="lnx")
    for r in range(16):
        k.I(f"v_lshlrev_b32 v{E+2*r}, 16, v{24+r}")
        k.I(f"v_and_b32 v{E+2*r+1}, 0xffff0000, v{24+r}")
    k.I(f"v_add_f32 v{S}, v{E}, v{E+1}")
    k.I(f"v_add_f32 v{S+1}, v{E+2}, v{E+3}")
    for r in range(4, 32, 2):
        k.I(f"v_add_f32 v{S}, v{S}, v{E+r}")
        k.I(f"v_add_f32 v{S+1}, v{S+1}, v{E+r+1}")
    k.I(f"v_add_f32 v{S}, v{S}, v{S+1}")
    half_wave_sum32(k, S, S + 2, S + 3)
    k.I(f"v_mul_f32 v{S}, {1.0/576!r}, v{S}")
    for r in range(32):
        k.I(f"v_sub_f32 v{E+r}, v{E+r}, v{S}")
    k.I(f"v_mul_f32 v{S}, v{E}, v{E}")
    k.I(f"v_mul_f32 v{S+1}, v{E+1}, v{E+1}")
    for r in range(2, 32, 2):
        k.I(f"v_fmac_f32 v{S}, v{E+r}, v{E+r}")
        k.I(f"v_fmac_f32 v{S+1}, v{E+r+1}, v{E+r+1}")
    k.I(f"v_add_f32 v{S}, v{S}, v{S+1}")
    k.I(f"v_mul_f32 v{S}, v{S}, v{t+5}")
    half_wave_sum32(k, S, S + 2, S + 3)
    k.I(f"v_mov_b32 v{S+1}, {1e-5!r}")
    k.I(f"v_fmac_f32 v{S+1}, {1.0/576!r}, v{S}")
    k.I(f"v_rsq_f32 v{S}, v{S+1}")
    k.I("s_nop 0")
    for r in range(32):
        k.I(f"v_mul_f32 v{E+r}, v{E+r}, v{S}")
    for g in range(4):
        d = 24 + 4 * g
        k.I(f"v_cvt_pk_bf16_f32 v{d}, v{E+4*g}, v{E+4*g+1}")
        k.I(f"v_cvt_pk_bf16_f32 v{d+1}, v{E+4*g+2}, v{E+4*g+3}")
        k.I(f"v_cvt_pk_bf16_f32 v{d+2}, v{E+16+4*g}, v{E+16+4*g+1}")
        k.I(f"v_cvt_pk_bf16_f32 v{d+3}, v{E+16+4*g+2}, v{E+16+4*g+3}")
    for g in range(4):
        d = 24 + 4 * g
        k.vmem(f"buffer_store_dwordx4 v[{d}:{d+3}], v{t+4}, s[{S_WS}:{S_WS+3}], 0 offen offset:{256*g}", "lnst")

def addresses(k):
    t = V_T + 6
    a, b, c, d = 100, 101, 102, 103
    L = V_L
    k.I(f"v_lshrrev_b32 v{a}, 4, v{L}")
    k.I(f"s_and_b32 s3, s{S_W}, 1")
    k.I(f"s_lshl_b32 s3, s3, 2")
    k.I(f"v_add_u32 v{b}, s3, v{a}")
    k.I(f"v_lshlrev_b32 v{b}, 1, v{b}")
    k.I(f"v_and_b32 v{c}, 15, v{L}")
    k.I(f"v_xor_b32 v{b}, v{b}, v{c}")
    k.I(f"v_lshlrev_b32 v{b}, 4, v{b}")
    k.I(f"s_lshl_b32 s3, s{S_W}, 3")
    k.I(f"v_add_u32 v{a}, s3, v{a}")
    k.I(f"v_lshl_add_u32 v{V_WD}, v{a}, 13, v{b}")
    k.I(f"v_lshrrev_b32 v{a}, 3, v{L}")
    k.I(f"v_lshrrev_b32 v{b}, 4, v{L}")
    k.I(f"v_and_b32 v{c}, 7, v{L}")
    for par in range(2):
        k.I(f"v_add_u32 v{d}, {4*par}, v{b}")
        k.I(f"v_xor_b32 v{d}, v{d}, v{c}")
        k.I(f"v_lshlrev_b32 v{d}, 4, v{d}")
        k.I(f"v_lshl_add_u32 v{V_CD+par}, v{a}, 10, v{d}")
    k.I(f"s_lshl_b32 s{S_WBASE}, s{S_HEAD}, 8")
    k.I(f"s_lshl_b32 s3, s{S_W}, 11")
    k.I(f"s_add_u32 s{S_WM0}, s3, {W_RING}")
    k.I(f"s_lshl_b32 s3, s{S_KB}, 8")
    k.I(f"s_lshl_b32 s4, s{S_W}, 6")
    k.I(f"s_add_u32 s3, s3, s4")
    k.I(f"s_lshl_b32 s{S_CBASE}, s3, 10")
    k.I(f"s_lshl_b32 s{S_CM0}, s{S_W}, 13")
    k.I(f"v_lshrrev_b32 v{a}, 4, v{L}")
    k.I(f"v_and_b32 v{b}, 15, v{L}")
    k.I(f"v_lshrrev_b32 v{c}, 2, v{b}")
    k.I(f"v_and_b32 v{d}, 1, v{a}")
    k.I(f"v_lshl_add_u32 v{d}, v{d}, 2, v{c}")
    k.I(f"v_lshl_add_u32 v{c}, v{a}, 3, v{c}")
    k.I(f"v_lshlrev_b32 v{c}, 8, v{c}")
    k.I(f"v_and_b32 v{b}, 3, v{b}")
    k.I(f"v_lshl_add_u32 v{c}, v{b}, 3, v{c}")
    k.I(f"s_lshr_b32 s3, s{S_W}, 1")
    k.I(f"s_lshl_b32 s3, s3, 13")
    k.I(f"s_add_u32 s3, s3, {W_RING}")
    k.I(f"v_add_u32 v{c}, s3, v{c}")
    for cb in range(8):
        k.I(f"v_xor_b32 v{b}, {cb}, v{d}")
        k.I(f"v_lshl_add_u32 v{V_WR+cb}, v{b}, 5, v{c}")
    k.I(f"v_and_b32 v{b}, 15, v{L}")
    k.I(f"v_lshrrev_b32 v{c}, 1, v{b}")
    k.I(f"s_and_b32 s3, s{S_W}, 1")
    k.I(f"s_lshl_b32 s3, s3, 14")
    k.I(f"v_lshlrev_b32 v{b}, 7, v{b}")
    k.I(f"v_add_u32 v{b}, s3, v{b}")
    for sp in range(2):
        k.I(f"v_add_u32 v{d}, {4*sp}, v{a}")
        k.I(f"v_xor_b32 v{d}, v{d}, v{c}")
        k.I(f"v_lshl_add_u32 v{V_CR+sp}, v{d}, 4, v{b}")
        k.I(f"v_add_u32 v{V_CR2+sp}, 0x10000, v{V_CR+sp}")
    k.I(f"v_lshrrev_b32 v{b}, 1, v{a}")
    k.I(f"v_lshlrev_b32 v{b}, 10, v{b}")
    k.I(f"v_and_b32 v{c}, 1, v{a}")
    k.I(f"v_lshl_add_u32 v{b}, v{c}, 9, v{b}")
    k.I(f"v_and_b32 v{c}, 15, v{L}")
    k.I(f"v_lshl_add_u32 v{V_ST}, v{c}, 4, v{b}")
    k.I(f"s_lshl_b32 s3, s{S_HEAD}, 20")
    k.I(f"s_lshl_b32 s4, s{S_KB}, 17")
    k.I(f"s_add_u32 s3, s3, s4")
    k.I(f"s_and_b32 s4, s{S_W}, 1")
    k.I(f"s_lshl_b32 s4, s4, 16")
    k.I(f"s_add_u32 s3, s3, s4")
    k.I(f"s_add_u32 s{S_ST}, s3, {KV_OFF}")

def dma_w(k, s):
    acts = []
    slot = s % 4
    for part, S in ((0, S_WUK), (1, S_WUV)):
        for j in range(2):
            def f(part=part, S=S, j=j):
                if j == 0:
                    k.I(f"s_add_u32 m0, s{S_WM0}, {slot*16384 + part*8192}")
                k.I(f"s_add_u32 s{S_T}, s{S_WBASE}, {s*32*8192 + j*(4*8192-1024)}")
                k.dma(f"buffer_load_dwordx4 v{V_WD}, s[{S}:{S+3}], s{S_T} offen offset:{j*1024} lds", ("W", s), ("W", slot))
            acts.append(f)
    return acts

def dma_c(k, j2, js):
    acts = []
    slot = j2 % 3
    for j in js:
        def f(j=j):
            if j % 4 == 0:
                k.I(f"s_add_u32 m0, s{S_CM0}, {slot*32768 + (j//4)*4096}")
            k.I(f"s_add_u32 s{S_T2}, s{S_CBASE}, {j*8192 + j2*128 - (j%4)*1024}")
            k.dma(f"buffer_load_dwordx4 v{V_CD + j%2}, s[{S_CKV}:{S_CKV+3}], s{S_T2} offen offset:{(j%4)*1024} lds", ("C", j2), ("C", slot))
        acts.append(f)
    return acts

def reads(k, s):
    acts = []
    wset = A_W + 32 * (s % 2); cset = A_C + 32 * (s % 2)
    j2 = s // 2; cslot = j2 % 3; sp = s % 2
    wr = []
    for db in range(8):
        for hh in range(2):
            def f(db=db, hh=hh):
                k.ds(f"ds_read_b64_tr_b16 a[{wset+4*db+2*hh}:{wset+4*db+2*hh+1}], v{V_WR+db} offset:{(s%4)*16384 + hh*1024}", ("F", s), ("W", s % 4))
            wr.append(f)
    cr = []
    for j in range(8):
        def f(j=j):
            if cslot < 2:
                k.ds(f"ds_read_b128 a[{cset+4*j}:{cset+4*j+3}], v{V_CR+sp} offset:{cslot*32768 + j*2048}", ("F", s), ("C", cslot))
            else:
                k.ds(f"ds_read_b128 a[{cset+4*j}:{cset+4*j+3}], v{V_CR2+sp} offset:{j*2048}", ("F", s), ("C", cslot))
        cr.append(f)
    for i in range(8):
        acts += [wr[2*i], wr[2*i+1], cr[i]]
    return acts

def main_loop(k, role, st):
    acc = acc_map(role)
    NS = 16
    for s in range(NS):
        k.comment(f"--- {role} step {s}")
        k.wait(lg=("F", s))
        if s + 1 < NS:
            k.wait(vm=[("W", s + 1), ("C", (s + 1) // 2)])
            k.barrier()
        wset = A_W + 32 * (s % 2); cset = A_C + 32 * (s % 2)
        mf = []
        for db in range(8):
            for kb in range(8):
                W = f"a[{wset+4*db}:{wset+4*db+3}]"; C = f"a[{cset+4*kb}:{cset+4*kb+3}]"
                D = acc[db, kb]; src = "0" if s == 0 else str(D)
                a, b = (W, C) if role == "K" else (C, W)
                mf.append(f"v_mfma_f32_16x16x32_bf16 {D}, {a}, {b}, {src}")
        fill = []
        if s + 1 < NS:
            for i, f in enumerate(reads(k, s + 1)):
                fill.append((1 + 2 * i, f))
        d = []
        if s + 4 < NS:
            d += dma_w(k, s + 4)
        if s >= 1:
            j2 = (s - 1) // 2 + 3
            if j2 < NS // 2:
                d += dma_c(k, j2, range(4) if s % 2 == 1 else range(4, 8))
        for i, f in enumerate(d):
            fill.append((2 + 6 * i, f))
        interleave(k, mf, fill)
    st.stamp()
    T = V_T
    first = True
    if role == "K":
        chunks = [((2*dp, kb), (2*dp+1, kb), (kb//2)*16384 + (dp//2)*4096, (dp % 2)*2048 + (kb % 2)*256) for dp in range(4) for kb in range(8)]
    else:
        chunks = [((db, 2*kp), (db, 2*kp+1), kp*16384 + 8192 + (db//4)*4096, ((db//2) % 2)*2048 + (db % 2)*256) for db in range(8) for kp in range(4)]
    if role == "V":
        chunks.sort(key=lambda c: (c[0][0], c[0][1]))
    for X, Y, so, imm in chunks:
        x, y = acc[X], acc[Y]
        assert x.f == "v"
        if y.f == "a":
            for r in range(4):
                k.I(f"v_accvgpr_read_b32 v{T+r}, a{y.base+r}")
            yb = T
        else:
            yb = y.base
        k.I(f"v_cvt_pk_bf16_f32 v{x.base}, v{x.base}, v{x.base+1}")
        k.I(f"v_cvt_pk_bf16_f32 v{x.base+1}, v{x.base+2}, v{x.base+3}")
        k.I(f"v_cvt_pk_bf16_f32 v{x.base+2}, v{yb}, v{yb+1}")
        k.I(f"v_cvt_pk_bf16_f32 v{x.base+3}, v{yb+2}, v{yb+3}")
        k.I(f"s_add_u32 s{S_T}, s{S_ST}, {so}")
        k.vmem(f"buffer_store_dwordx4 v[{x.base}:{x.base+3}], v{V_ST}, s[{S_WS}:{S_WS+3}], s{S_T} offen offset:{imm}", "st")
    st.stamp()
    if STAMPS:
        k.wait_all(); st.stamp()
    st.flush(S_WS, S_W, V_T + 1)

def emit(k, name, idx=0):
    st = Stamper(k, idx)
    kernel_head(k, name)
    k.I("s_cmp_ge_u32 s2, 256")
    k.I(f"s_cbranch_scc1 {name}_end")
    st.stamp()
    setup(k)
    ln_loads(k)
    addresses(k)
    order = dma_w(k, 0) + dma_c(k, 0, range(8)) + dma_w(k, 1) + dma_w(k, 2) + dma_c(k, 1, range(8)) + dma_w(k, 3) + dma_c(k, 2, range(8))
    for f in order:
        f()
    st.stamp()
    ln_compute(k)
    st.stamp()
    k.wait(vm=[("W", 0), ("C", 0)])
    k.barrier()
    st.stamp()
    for f in reads(k, 0):
        f()
    k.I(f"s_cmp_ge_u32 s{S_W}, 2")
    k.I(f"s_cbranch_scc1 {name}_v")
    import copy
    n0 = st.n
    sv = copy.deepcopy((k.vm, k.lg, k.epoch, k.reg_fill, k.fill_wait_epoch, k.read_done_epoch, k.read_pending))
    main_loop(k, "K", st)
    k.I("s_endpgm")
    k.label(f"{name}_v")
    k.vm, k.lg, k.epoch, k.reg_fill, k.fill_wait_epoch, k.read_done_epoch, k.read_pending = sv
    st.n = n0
    main_loop(k, "V", st)
    k.label(f"{name}_end")
    k.I("s_endpgm")
```

```python
import sys
from common import *
import kv, gu, attn, fin

def build(phases, path):
    launches = []
    k = Emit()
    descs = []
    for ph in phases:
        if ph == "kv":
            kv.emit(k, "kv_kernel", len(descs)); descs.append("kv_kernel")
        if ph == "attn":
            attn.emit(k, "attn_kernel", len(descs)); descs.append("attn_kernel")
        if ph == "fin":
            fin.emit(k, "fin_kernel", len(descs)); descs.append("fin_kernel")
        if ph == "red":
            fin.emit_reduce(k, "red_kernel", len(descs)); descs.append("red_kernel")
        if ph == "gu":
            gu.emit(k, "gu_kernel", len(descs)); descs.append("gu_kernel")
        k.vm, k.lg = [], []
        k.reg_fill, k.fill_wait_epoch, k.read_done_epoch, k.read_pending = {}, {}, {}, {}
    head = ref_header()
    for d in descs:
        head += f"; @launch kernel={d} grid=(256,1,1) block=(256,1,1) lds={0 if d == 'red_kernel' else LDS_BYTES}\n"
    errs = lint(k.lines)
    for e in errs[:40]:
        print("HAZARD:", e)
    body = '.amdgcn_target "amdgcn-amd-amdhsa--gfx950"\n.text\n' + k.text()
    body += '.section .rodata,"a"\n.p2align 6\n'
    for d in descs:
        body += (kernel_desc(d, 128, 128) if d == "red_kernel" else kernel_desc(d)) + ".p2align 6\n"
    open(path, "w").write(head + body)
    print(f"wrote {path}: {len(head+body)} bytes, {len(k.lines)} lines, {len(errs)} hazards")

def ref_header():
    return "; CDNA4 (gfx950) kernels: LayerNorm, MLA-style attention branch and GEGLU FFN branch.\n"

if __name__ == "__main__":
    build(sys.argv[2:], sys.argv[1])
```
